```python
import torch

def _softmax(x, axis=-1):
    return torch.softmax(x, dim=axis)
def _gelu(x):
    return torch.nn.functional.gelu(x, approximate="tanh")
def _silu(x):
    return torch.nn.functional.silu(x)
def _sigmoid(x):
    return torch.sigmoid(x)
def _layernorm(x, axis=-1, eps=1e-5):
    m = x.mean(dim=axis, keepdim=True)
    v = x.var(dim=axis, keepdim=True, unbiased=False)
    return (x - m) / torch.sqrt(v + eps)
def _scatter_add(tgt, idx, src, axis=0):
    return tgt.clone().index_add_(axis, idx, src)
def _segment_sum(src, seg, n):
    out = torch.zeros((n,) + src.shape[1:], dtype=src.dtype)
    return out.index_add_(0, seg, src)
def _pad(x, pw):
    flat = tuple(v for pair in reversed(pw) for v in pair)
    return torch.nn.functional.pad(x, flat)

kernel_name = 'concat_heads__sliding_local_dilated__linear_kernel_hedgehog__prompt'

def setup_inputs():

    _w = (lambda a: (lambda t: t.to(torch.bfloat16) if t.is_floating_point() else t)(torch.as_tensor(a)))
    def _A_setup():
        B, S, D = 1, 2048, 640
        return {
            "x": _w((lambda *s: torch.randn(*s, dtype=torch.bfloat16) * 0.2)(B, S, D)),
            "wqkv": _w((lambda *s: torch.randn(*s, dtype=torch.bfloat16) * 0.2)(D, 3 * D)),
            "wo": _w((lambda *s: torch.randn(*s, dtype=torch.bfloat16) * 0.05)(D, D)),
        }
    _A_in = _A_setup()

    def _B_setup():
        B, S, D, H = 1, 2048, 640, 32
        Dh = D // H
        return {
            "x": _w((lambda *s: torch.randn(*s, dtype=torch.bfloat16) * 0.2)(B, S, D)),
            "wqkv": _w((lambda *s: torch.randn(*s, dtype=torch.bfloat16) * 0.8)(D, 3 * D)),
            "w_phi": _w((lambda *s: torch.randn(*s, dtype=torch.bfloat16) * 0.8)(H, Dh, Dh) * (Dh ** -0.5)),
            "wo": _w((lambda *s: torch.randn(*s, dtype=torch.bfloat16) * 0.2)(D, D)),
        }
    _B_in = _B_setup()

    return {
        "A_x": _A_in["x"],
        "A_wqkv": _A_in["wqkv"],
        "A_wo": _A_in["wo"],
        "B_x": _B_in["x"],
        "B_wqkv": _B_in["wqkv"],
        "B_w_phi": _B_in["w_phi"],
        "B_wo": _B_in["wo"],
    }

def reference(A_x, A_wqkv, A_wo, B_x, B_wqkv, B_w_phi, B_wo):
    def _A_ref(x, wqkv, wo):
        B, S, D = x.shape
        H = 32; Dh = D // H
        W, dil = 8, 2
        qkv = (lambda x, *d: x.permute(*d))((x @ wqkv).reshape(B, S, 3, H, Dh), 2, 0, 3, 1, 4)
        q, k, v = qkv[0], qkv[1], qkv[2]
        scale = Dh ** -0.5
        pos = torch.arange(S)
        off = torch.arange(W) * dil
        idx = pos[:, None] - off[None, :]
        mask = idx >= 0
        idx_c = torch.where(mask, idx, 0).reshape(-1)
        kg = k[:, :, idx_c, :].reshape(B, H, S, W, Dh)
        vg = v[:, :, idx_c, :].reshape(B, H, S, W, Dh)
        logits = torch.einsum("bhsd,bhswd->bhsw", q, kg) * scale
        logits = torch.where(mask[None, None, :, :], logits, -1e9)
        attn = _softmax(logits, axis=-1)
        o = torch.einsum("bhsw,bhswd->bhsd", attn, vg)
        return (lambda x, *d: x.permute(*d))(o, 0, 2, 1, 3).reshape(B, S, D) @ wo

    def _B_ref(x, wqkv, w_phi, wo):
        B, S, D = x.shape
        H = 32; Dh = D // H
        qkv = (lambda x, *d: x.permute(*d))((x @ wqkv).reshape(B, S, 3, H, Dh), 2, 0, 3, 1, 4)
        q, k, v = qkv[0], qkv[1], qkv[2]
        pq = torch.einsum("bhsd,hdf->bhsf", q, w_phi)
        pk = torch.einsum("bhsd,hdf->bhsf", k, w_phi)
        phi_q = torch.concatenate([_softmax(pq, axis=-1), _softmax(-pq, axis=-1)], axis=-1)
        phi_k = torch.concatenate([_softmax(pk, axis=-1), _softmax(-pk, axis=-1)], axis=-1)
        kv = torch.einsum("bhsf,bhsd->bhfd", phi_k, v)
        z  = torch.einsum("bhsf->bhf", phi_k)
        num = torch.einsum("bhqf,bhfd->bhqd", phi_q, kv)
        den = torch.einsum("bhqf,bhf->bhq", phi_q, z)[..., None] + 1e-6
        o = num / den
        return (lambda x, *d: x.permute(*d))(o, 0, 2, 1, 3).reshape(B, S, D) @ wo

    a = _A_ref(A_x, A_wqkv, A_wo)
    b = _B_ref(B_x, B_wqkv, B_w_phi, B_wo)
    return torch.concatenate([a, b], axis=-1)
```

```python
import re

_REG = re.compile(r'^(-|abs\(|\|)?([vas])(?:(\d+)|\[(\d+):(\d+)\])\)?\|?$')

TRANS = ('v_exp_f32', 'v_log_f32', 'v_rcp_f32', 'v_rsq_f32', 'v_sqrt_f32', 'v_sin_f32', 'v_cos_f32',
         'v_rcp_iflag_f32', 'v_exp_f16', 'v_rcp_f16')


def regs_of(tok):
    tok = tok.strip()
    if tok in ('vcc', 'exec'):
        return {tok + '_lo', tok + '_hi'}
    if tok in ('vcc_lo', 'vcc_hi', 'exec_lo', 'exec_hi', 'm0', 'scc'):
        return {tok}
    m = _REG.match(tok)
    if not m:
        return set()
    k = m.group(2)
    if m.group(3) is not None:
        return {k + m.group(3)}
    return {k + str(i) for i in range(int(m.group(4)), int(m.group(5)) + 1)}


class Ins:
    __slots__ = ('text', 'op', 'ops', 'mods', 'rd', 'wr', 'kind', 'passes', 'states', 'label', 'target',
                 'srcc', 'dpp', 'wide_store', 'lds_dma', 'srcab')

    def __init__(self, text):
        self.text = text
        self.label = None
        self.target = None
        self.rd = set()
        self.wr = set()
        self.kind = 'other'
        self.passes = 0
        self.states = 1
        self.srcc = set()
        self.srcab = set()
        self.dpp = False
        self.wide_store = set()
        self.lds_dma = False
        t = text.split(';')[0].strip()
        if not t:
            self.kind = 'blank'
            self.states = 0
            self.op = ''
            return
        if t.endswith(':'):
            self.label = t[:-1]
            self.kind = 'label'
            self.states = 0
            self.op = ''
            return
        if t.startswith('.'):
            self.kind = 'dir'
            self.states = 0
            self.op = ''
            return
        parts = t.split(None, 1)
        op = parts[0]
        self.op = op
        rest = parts[1] if len(parts) > 1 else ''
        ops = []
        depth = 0
        cur = ''
        for ch in rest:
            if ch == '[' or ch == '(':
                depth += 1
            if ch == ']' or ch == ')':
                depth -= 1
            if ch == ',' and depth == 0:
                ops.append(cur.strip())
                cur = ''
            else:
                cur += ch
        mods = ''
        if cur.strip():
            last = cur.strip().split(None, 1)
            ops.append(last[0])
            if len(last) > 1:
                mods = last[1]
        self.ops = ops
        self.mods = mods
        R = [regs_of(o) for o in ops]
        base = re.sub(r'_(e32|e64|dpp|sdwa)$', '', op)
        allr = set().union(*R) if R else set()
        if op == 's_nop':
            self.kind = 'nop'
            self.states = int(ops[0], 0) + 1
        elif op in ('s_branch',) or op.startswith('s_cbranch'):
            self.kind = 'branch'
            self.target = ops[0]
            if 'vcc' in op:
                self.rd = {'vcc_lo', 'vcc_hi'}
            if 'exec' in op:
                self.rd = {'exec_lo', 'exec_hi'}
        elif op.startswith('s_load') or op.startswith('s_buffer_load') or op in ('s_memtime', 's_memrealtime'):
            self.kind = 'smem'
            self.wr = R[0]
            self.rd = set().union(*R[1:]) if len(R) > 1 else set()
        elif op.startswith('s_'):
            self.kind = 'salu'
            if op.startswith('s_cmp') or op.startswith('s_bitcmp') or op in (
                    's_waitcnt', 's_barrier', 's_endpgm', 's_setprio', 's_sleep', 's_sethalt'):
                self.rd = allr
            else:
                self.wr = R[0] if R else set()
                self.rd = set().union(*R[1:]) if len(R) > 1 else set()
                if 'saveexec' in op:
                    self.wr = self.wr | {'exec_lo', 'exec_hi'}
        elif op.startswith('v_mfma'):
            self.kind = 'mfma'
            self.wr = R[0]
            self.srcab = R[1] | R[2]
            self.srcc = R[3]
            self.rd = self.srcab | self.srcc
            if '32x32x16' in op or '32x32x8' in op:
                self.passes = 8
            elif '16x16x32' in op or '16x16x16' in op:
                self.passes = 4
            else:
                raise ValueError('unknown mfma ' + op)
        elif op.startswith('v_'):
            self.kind = 'valu'
            if base in TRANS:
                self.kind = 'trans'
            if op.endswith('_dpp') or 'quad_perm' in mods or 'row_' in mods or 'wave_' in mods:
                self.dpp = True
            if base.startswith('v_cmpx'):
                raise ValueError('v_cmpx not handled')
            if base in ('v_add_co_u32', 'v_sub_co_u32', 'v_addc_co_u32', 'v_subb_co_u32', 'v_subrev_co_u32',
                        'v_mad_u64_u32', 'v_div_scale_f32'):
                self.wr = R[0] | R[1]
                self.rd = set().union(*R[2:])
            elif base.startswith('v_permlane') and 'swap' in base:
                self.wr = R[0] | R[1]
                self.rd = R[0] | R[1]
            elif base == 'v_swap_b32':
                self.wr = R[0] | R[1]
                self.rd = R[0] | R[1]
            elif base == 'v_nop':
                pass
            else:
                self.wr = R[0]
                self.rd = set().union(*R[1:]) if len(R) > 1 else set()
                if base.startswith('v_fmac') or base.startswith('v_pk_fmac') or base.startswith('v_dot2c') \
                        or base == 'v_writelane_b32' or self.dpp or ('op_sel:' in mods and not base.startswith('v_pk_')):
                    self.rd = self.rd | R[0]
        elif op.startswith('ds_'):
            self.kind = 'ds'
            if op.startswith('ds_read') or op.startswith('ds_bpermute') or op.startswith('ds_permute') \
                    or op.startswith('ds_swizzle') or '_rtn' in op:
                self.wr = R[0]
                self.rd = set().union(*R[1:])
            else:
                self.rd = allr
        elif op.startswith('buffer_') or op.startswith('global_'):
            self.kind = 'vmem'
            modl = mods.split()
            is_lds = 'lds' in modl or '_lds_' in op
            if op in ('buffer_wbl2', 'buffer_inv'):
                pass
            elif is_lds:
                self.lds_dma = True
                self.rd = allr | {'m0'}
            elif '_load' in op:
                self.wr = R[0]
                self.rd = set().union(*R[1:])
            elif 'atomic' in op:
                self.rd = allr
                if 'sc0' in modl:
                    self.wr = R[0]
            else:
                self.rd = allr
                if op.endswith('x4') or op.endswith('x3'):
                    self.wide_store = R[0] if op.startswith('buffer_') else R[1]
        else:
            raise ValueError('unknown instruction: ' + text)


def _sg(s):
    return {r for r in s if r[0] == 's' and r != 'scc' or r.startswith('vcc')}


def need(p, c):
    n = 0
    pv = p.kind in ('valu', 'trans')
    cv = c.kind in ('valu', 'trans')
    if pv:
        sw = {r for r in p.wr if (r[0] == 's') or r.startswith('vcc')}
        vw = {r for r in p.wr if r[0] in 'va' and not r.startswith('vcc')}
        if sw:
            if c.kind == 'vmem' and sw & c.rd:
                n = max(n, 5)
            if cv and sw & c.rd:
                n = max(n, 4 if c.op.startswith(('v_readlane', 'v_writelane')) else 2)
            if c.kind == 'mfma' and sw & c.rd:
                n = max(n, 2)
        if vw:
            if cv and c.dpp and vw & c.rd:
                n = max(n, 2)
            if c.op.startswith(('v_readlane', 'v_readfirstlane')) and vw & c.rd:
                n = max(n, 1)
            if c.op.startswith('v_permlane') and vw & c.rd:
                n = max(n, 2)
            if c.kind == 'mfma' and vw & c.rd:
                n = max(n, 2)
            if p.kind == 'trans' and c.kind in ('valu', 'trans', 'vmem', 'ds') and vw & c.rd:
                n = max(n, 1)
            if (('op_sel:' in p.mods and not p.op.startswith('v_pk_')) or 'sdwa' in p.op or 'dst_sel' in p.mods) and cv and vw & (c.rd | c.wr):
                n = max(n, 1)
    if p.kind == 'salu' and 'm0' in p.wr and (c.lds_dma or 'addtid' in c.op):
        n = max(n, 1)
    if p.wide_store and p.wide_store & c.wr:
        n = max(n, 2)
    if p.kind == 'mfma':
        P = p.passes
        d = p.wr
        if c.kind == 'mfma':
            if d & c.srcab:
                n = max(n, P + 4)
            if d & c.srcc:
                if c.srcc == d and c.passes == P:
                    pass
                else:
                    n = max(n, P + 2)
            if d & c.wr and not (c.srcc == d):
                n = max(n, P + 2)
        elif c.kind in ('valu', 'trans', 'vmem', 'ds'):
            if d & (c.rd | c.wr):
                n = max(n, P + 4)
            if cv and p.srcc & c.wr:
                n = max(n, P - 1)
            if c.kind in ('vmem', 'ds') and p.srcc & c.wr:
                n = max(n, P - 1)
    return n


class Asm:
    def __init__(self):
        self.ins = []

    def __call__(self, text):
        for line in text.split('\n'):
            self.ins.append(Ins(line))

    def label(self, name):
        self.ins.append(Ins(name + ':'))

    def finish(self):
        W = 24
        out = []

        def req(window, c):
            dist = 0
            r = 0
            for p in reversed(window):
                if p.states == 0:
                    continue
                k = need(p, c) - dist
                if k > r:
                    r = k
                dist += p.states
                if dist > W:
                    break
            return r

        nnop = 0
        for c in self.ins:
            if c.states and c.kind != 'nop':
                r = req(out[-80:], c)
                while r > 0:
                    k = min(r, 16)
                    out.append(Ins('s_nop %d' % (k - 1)))
                    nnop += 1
                    r -= k
            out.append(c)
        changed = True
        while changed:
            changed = False
            labels = {x.label: i for i, x in enumerate(out) if x.label}
            for i, b in enumerate(out):
                if b.kind != 'branch' or b.target not in labels:
                    continue
                j = labels[b.target]
                window = out[max(0, i - 80):i + 1]
                tail = []
                dist = 0
                add = 0
                for c in out[j:j + 60]:
                    if c.states == 0:
                        continue
                    if c.kind != 'nop':
                        r = req(window + tail, c)
                        if r > add:
                            add = r
                    tail.append(c)
                    dist += c.states
                    if dist > W or c.op in ('s_branch', 's_endpgm'):
                        break
                if add > 0:
                    out.insert(i, Ins('s_nop %d' % (min(add, 16) - 1)))
                    changed = True
                    nnop += 1
                    break
        self.nnop = nnop
        lines = []
        for x in out:
            if x.kind in ('label', 'dir'):
                lines.append(x.text.strip())
            else:
                lines.append('    ' + x.text.strip())
        return '\n'.join(lines) + '\n'


HEADER_FMT = """.amdgcn_target "amdgcn-amd-amdhsa--gfx950"
.text
"""


def kernel_open(name):
    return ".globl %s\n.p2align 8\n.type %s,@function\n%s:\n" % (name, name, name)


def kernel_desc(name, vgpr, accum, sgpr=102):
    return """.section .rodata,"a"
.p2align 6
.amdhsa_kernel %s
  .amdhsa_next_free_vgpr %d
  .amdhsa_next_free_sgpr %d
  .amdhsa_accum_offset %d
  .amdhsa_group_segment_fixed_size 0
  .amdhsa_kernarg_size 80
  .amdhsa_user_sgpr_count 2
  .amdhsa_user_sgpr_kernarg_segment_ptr 1
  .amdhsa_system_sgpr_workgroup_id_x 1
.end_amdhsa_kernel
.text
""" % (name, vgpr, sgpr, accum)
```

```python
import sys
from asmlib import *

NAME = 'concat_heads__sliding_local_dilated__linear_kernel_hedgehog__prompt'

WS_OF = 0
WS_HALO = 6 << 20
WS_KVP = 7 << 20
KVP_REC = 13440
WS_FLAG = 9 << 20
WS_DBG = 16 << 20
WS_BYTES = 32 << 20
REC_KVB = 10240
REC_ZA = 12800
REC_ZB = 13312

SLOT = 20480
NSLOT = 7
SPARE = SLOT * NSLOT
LDS_BYTES = 163840
KBUF = SPARE
HALOV = SPARE + 7 * 2560
VBUF = SLOT * 1
WPHI = SPARE
PHI0 = SPARE
PHI1 = SLOT * 2
KVOP = SLOT * 1
OP_KVB = 5120
OP_ZA = 6400
OP_ZB = 6656
OP_ZERO = 6720

LOG2E = 1.4426950408889634
SCALE = 20 ** -0.5

SX, SW, SWS, SDBG, SAUX, SOUT = 8, 12, 16, 20, 24, 44
sWAVE, sRB, sHG, sBR = 28, 29, 30, 31
sXO = 32
sWO = 37
sWL = 42
sNONCE = 43
sT0, sT1, sT2, sT3 = 3, 4, 5, 6
sL2E = 48
sM = 50
sM2 = 52
sGE = 54
sLE = 60
sPOLL = 66
sSAVE = 68
sTS = 70

vLANE = 0
vTR = 1
vWD = 4
vXO = 7
vTMP = 8
vACC = 24
vFR = 44
vX = 60
vK = 140
vV = 150
vQ = 160
vWA = 172
vWB = 188
vPHI = 200
vEN = 220
vMISC = 240
FRB = [44, 48, 52, 56, 220, 224, 228, 232]


def f2u(x):
    import struct
    return struct.unpack('<I', struct.pack('<f', x))[0]


def vr(b, n=4):
    return 'v[%d:%d]' % (b, b + n - 1)


def sr(b, n=2):
    return 's[%d:%d]' % (b, b + n - 1)


class VM:
    def __init__(self):
        self.ops = []

    def add(self, tag, n=1):
        self.ops += [tag] * n

    def wait(self, a, *tags):
        last = -1
        for i, t in enumerate(self.ops):
            if t in tags:
                last = i
        n = len(self.ops) - 1 - last
        assert last >= 0, tags
        a('s_waitcnt vmcnt(%d)' % min(n, 63))


class Gen:
    def __init__(self, stamps=False, dbg=False):
        self.stamps = stamps
        self.dbg = dbg
        self.nlab = 0

    def lab(self, p='L'):
        self.nlab += 1
        return '%s_%d' % (p, self.nlab)

    def stamp(self, a, i):
        if self.stamps is True and isinstance(i, int):
            a('s_memrealtime %s' % sr(sTS + 2 * i))
        elif isinstance(self.stamps, list) and i in self.stamps:
            a('s_memrealtime %s' % sr(sTS + 2 * self.stamps.index(i)))

    def stamp_out(self, a, n, base):
        if not self.stamps:
            return
        if isinstance(self.stamps, list):
            n = len(self.stamps)
        L = self.lab('Lst')
        a('s_waitcnt lgkmcnt(0)')
        a('s_cmp_lg_u32 s%d, 0' % sWAVE)
        a('s_cbranch_scc1 %s' % L)
        a('s_lshl_b32 s%d, s2, 6' % sT0)
        a('s_add_u32 s%d, s%d, %d' % (sT0, sT0, base))
        a('v_mov_b32 v%d, 0' % vTMP)
        a('s_mov_b64 exec, 1')
        for i in range(n):
            a('v_mov_b32 v%d, s%d' % (vTMP + 1, sTS + 2 * i))
            a('buffer_store_dword v%d, v%d, %s, s%d offen offset:%d' % (vTMP + 1, vTMP, sr(SWS, 4), sT0, 4 * i))
        a('s_mov_b64 exec, -1')
        a.label(L)

    def srd(self, a, d, src, nbytes):
        a('s_mov_b32 s%d, s%d' % (d, src))
        a('s_mov_b32 s%d, s%d' % (d + 1, src + 1))
        a('s_mov_b32 s%d, %d' % (d + 2, nbytes))
        a('s_mov_b32 s%d, 0x20000' % (d + 3))

    def mask(self, a, s, val):
        a('s_mov_b32 s%d, 0x%x' % (s, val & 0xffffffff))
        a('s_mov_b32 s%d, 0x%x' % (s + 1, (val >> 32) & 0xffffffff))

    def decode(self, a, endlab):
        a('s_cmp_ge_u32 s2, 256')
        a('s_cbranch_scc1 %s' % endlab)
        self.stamp(a, 0)
        a('s_and_b32 s%d, s2, 7' % sT0)
        a('s_lshr_b32 s%d, s2, 3' % sT1)
        a('s_lshr_b32 s%d, s%d, 2' % (sBR, sT0))
        a('s_and_b32 s%d, s%d, 1' % (sRB, sT0))
        a('s_lshl_b32 s%d, s%d, 3' % (sRB, sRB))
        a('s_and_b32 s%d, s%d, 7' % (sT2, sT1))
        a('s_add_u32 s%d, s%d, s%d' % (sRB, sRB, sT2))
        a('s_bfe_u32 s%d, s%d, 0x10001' % (sHG, sT0))
        a('s_lshl_b32 s%d, s%d, 2' % (sHG, sHG))
        a('s_lshr_b32 s%d, s%d, 3' % (sT3, sT1))
        a('s_add_u32 s%d, s%d, s%d' % (sHG, sHG, sT3))
        a('v_lshrrev_b32 v%d, 6, v0' % vTMP)
        a('v_readfirstlane_b32 s%d, v%d' % (sWAVE, vTMP))
        a('v_and_b32 v%d, 63, v0' % vLANE)

    def div10(self, a, vq, vrow, vc):
        a('v_mul_u32_u24 v%d, 6554, v%d' % (vrow, vq))
        a('v_lshrrev_b32 v%d, 16, v%d' % (vrow, vrow))
        a('v_mul_u32_u24 v%d, 10, v%d' % (vc, vrow))
        a('v_sub_u32 v%d, v%d, v%d' % (vc, vq, vc))

    def tr_base(self, a):
        a('v_lshrrev_b32 v%d, 2, v%d' % (vTMP, vLANE))
        a('v_mul_u32_u24 v%d, 160, v%d' % (vTMP, vTMP))
        a('v_and_b32 v%d, 3, v%d' % (vTMP + 1, vLANE))
        a('v_lshl_add_u32 v%d, v%d, 3, v%d' % (vTR, vTMP + 1, vTMP))
        a('v_add_u32 v%d, 61440, v%d' % (vTR + 1, vTR))
        a('v_add_u32 v%d, 122880, v%d' % (vTR + 2, vTR))

    def tr_read(self, a, dst, ldsaddr):
        b = ldsaddr // 61440
        off = ldsaddr - b * 61440
        assert off < 65536 and b < 3
        a('ds_read_b64_tr_b16 %s, v%d offset:%d' % (vr(dst, 2), vTR + b, off))

    def dma3(self, a, vm, tag, srd, ssoff, ldsbase, voff=vWD):
        for i in range(3):
            a('s_add_u32 m0, s%d, %d' % (sWL, ldsbase + 1024 * i))
            if i == 2:
                a('s_mov_b32 exec_hi, 0')
            a('buffer_load_dwordx4 v%d, %s, s%d offen lds' % (voff + i, sr(srd, 4), ssoff))
            if i == 2:
                a('s_mov_b32 exec_hi, -1')
        vm.add(tag, 3)

    def issue_stage(self, a, vm, s):
        part = (1280, 2560, 0)[s // 5]
        u = s % 5
        a('s_add_u32 s%d, s%d, %d' % (sT0, sWO + u, part))
        self.dma3(a, vm, 'S%d' % s, SW, sT0, (s % NSLOT) * SLOT)

    def issue_x(self, a, vm, u):
        for i in range(4):
            a('buffer_load_dwordx4 %s, v%d, %s, s%d offen offset:%d' % (
                vr(vX + 16 * u + 4 * i), vXO, sr(SX, 4), sXO + u, 1280 * i))
        vm.add('X%d' % u, 4)

    def transpose_x(self, a, u):
        R = lambda i, d: vX + 16 * u + 4 * i + d
        T = lambda i, d: vTMP + 4 * i + d
        dpp1 = 'quad_perm:[1,0,3,2] row_mask:0xf bank_mask:0xf'
        dpp2 = 'quad_perm:[2,3,0,1] row_mask:0xf bank_mask:0xf'
        a('s_mov_b32 vcc_lo, 0x55555555\ns_mov_b32 vcc_hi, 0x55555555')
        for i in (0, 2):
            for d in range(4):
                a('v_cndmask_b32_dpp v%d, v%d, v%d, vcc %s' % (T(i, d), R(i + 1, d), R(i, d), dpp1))
        a('s_mov_b32 vcc_lo, 0xaaaaaaaa\ns_mov_b32 vcc_hi, 0xaaaaaaaa')
        for i in (0, 2):
            for d in range(4):
                a('v_cndmask_b32_dpp v%d, v%d, v%d, vcc %s' % (T(i + 1, d), R(i, d), R(i + 1, d), dpp1))
        a('s_mov_b32 vcc_lo, 0x33333333\ns_mov_b32 vcc_hi, 0x33333333')
        for i in (0, 1):
            for d in range(4):
                a('v_cndmask_b32_dpp v%d, v%d, v%d, vcc %s' % (R(i, d), T(i + 2, d), T(i, d), dpp2))
        a('s_mov_b32 vcc_lo, 0xcccccccc\ns_mov_b32 vcc_hi, 0xcccccccc')
        for i in (0, 1):
            for d in range(4):
                a('v_cndmask_b32_dpp v%d, v%d, v%d, vcc %s' % (R(i + 2, d), T(i, d), T(i + 2, d), dpp2))

    def pipeline(self, a, frags, hooks, D=7):
        n = len(frags)
        NB = D + 1
        out = 0
        pend = []

        def mf(m):
            nonlocal out
            a0, a1, bop, acc, first = frags[m]
            later = 2 * (len(pend) - 1)
            if out > later:
                a('s_waitcnt lgkmcnt(%d)' % later)
                out = later
            fb = FRB[m % NB]
            a('v_mfma_f32_16x16x32_bf16 %s, %s, %s, %s' % (vr(acc), vr(fb), vr(bop), '0' if first else vr(acc)))
            pend.pop(0)

        post = None
        for i in range(n):
            if i in hooks:
                if out:
                    a('s_waitcnt lgkmcnt(0)')
                    out = 0
                post = hooks[i]()
            if len(pend) == NB:
                mf(pend[0])
            fb = FRB[i % NB]
            self.tr_read(a, fb, frags[i][0])
            self.tr_read(a, fb + 2, frags[i][1])
            out += 2
            pend.append(i)
            if len(pend) > D and post is None:
                mf(pend[0])
            if post is not None and (i + 1) % 20 == D:
                post()
                post = None
        while pend:
            mf(pend[0])

    def gemm_pass(self, a, vm, p, extra=None):
        frags = []
        hooks = {}
        for u in range(5):
            s = 5 * p + u
            base = (s % NSLOT) * SLOT

            def hook(s=s, u=u):
                tags = ['S%d' % s] + (['X%d' % u] if p == 0 else [])
                self.stamp(a, 'w%d' % s)
                if extra and ('pre', s) in extra:
                    extra[('pre', s)]()
                else:
                    vm.wait(a, *tags)
                self.stamp(a, 'x%d' % s)
                a('s_barrier')
                self.stamp(a, 'b%d' % s)
                if 1 <= s and s + 6 < 15:
                    self.issue_stage(a, vm, s + 6)
                if extra and ('post', s) in extra:
                    extra[('post', s)]()
                if p == 0:
                    return lambda: self.transpose_x(a, u)
                return None

            hooks[20 * u] = hook
            for t in range(4):
                for ct in range(5):
                    a0 = base + t * 5120 + ct * 32
                    frags.append((a0, a0 + 2560, vX + 16 * u + 4 * t, vACC + 4 * ct, u == 0 and t == 0))
        self.pipeline(a, frags, hooks)

    def pack_acc(self, a, dst):
        for ct in range(5):
            a('v_cvt_pk_bf16_f32 v%d, v%d, v%d' % (dst + 2 * ct, vACC + 4 * ct, vACC + 4 * ct + 1))
            a('v_cvt_pk_bf16_f32 v%d, v%d, v%d' % (dst + 2 * ct + 1, vACC + 4 * ct + 2, vACC + 4 * ct + 3))

    def reduce4(self, a, op, m, z):
        a('v_permlane32_swap_b32 v%d, v%d' % (m[0], m[2]))
        a('v_permlane32_swap_b32 v%d, v%d' % (m[1], m[3]))
        a('%s v%d, v%d, v%d' % (op, m[0], m[0], m[2]))
        a('%s v%d, v%d, v%d' % (op, m[1], m[1], m[3]))
        a('v_permlane16_swap_b32 v%d, v%d' % (m[0], m[1]))
        a('%s v%d, v%d, v%d' % (op, z, m[0], m[1]))

    def bcast4(self, a, z, o):
        a('v_mov_b32 v%d, v%d' % (o[0], z))
        a('v_mov_b32 v%d, v%d' % (o[1], z))
        a('v_permlane16_swap_b32 v%d, v%d' % (o[0], o[1]))
        a('v_mov_b32 v%d, v%d' % (o[2], o[0]))
        a('v_mov_b32 v%d, v%d' % (o[3], o[1]))
        a('v_permlane32_swap_b32 v%d, v%d' % (o[0], o[2]))
        a('v_permlane32_swap_b32 v%d, v%d' % (o[1], o[3]))

    def poll(self, a, vaddr, vdat, lanes_mask, soff='0'):
        L = self.lab('Lpoll')
        Ld = self.lab('Lpd')
        self.mask(a, sSAVE, lanes_mask)
        a('s_mov_b64 exec, %s' % sr(sSAVE))
        a('s_mov_b32 s%d, 0' % sPOLL)
        a.label(L)
        a('buffer_load_dword v%d, v%d, %s, %s offen sc1' % (vdat, vaddr, sr(SWS, 4), soff))
        a('s_waitcnt vmcnt(0)')
        a('v_cmp_ne_u32 vcc, s%d, v%d' % (sNONCE, vdat))
        a('s_cbranch_vccz %s' % Ld)
        a('s_add_u32 s%d, s%d, 1' % (sPOLL, sPOLL))
        a('s_cmp_lt_u32 s%d, 0x40000' % sPOLL)
        a('s_sleep 1')
        a('s_cbranch_scc1 %s' % L)
        a.label(Ld)
        a('s_mov_b64 exec, -1')

    def set_flag(self, a, sidx):
        L = self.lab('Lfl')
        a('s_cmp_lg_u32 s%d, 0' % sWAVE)
        a('s_cbranch_scc1 %s' % L)
        a('v_mov_b32 v%d, 0' % (vTMP + 14))
        a('v_mov_b32 v%d, s%d' % (vTMP + 15, sNONCE))
        a('s_mov_b64 exec, 1')
        a('buffer_store_dword v%d, v%d, %s, s%d offen sc1' % (vTMP + 15, vTMP + 14, sr(SWS, 4), sidx))
        a('s_mov_b64 exec, -1')
        a.label(L)

    def dump(self, a, reg, n, slot):
        if not self.dbg:
            return
        a('s_lshl_b32 s%d, s2, 3' % sT0)
        a('s_add_u32 s%d, s%d, s%d' % (sT0, sT0, sWAVE))
        a('s_mul_i32 s%d, s%d, %d' % (sT0, sT0, 32 * 256))
        a('s_add_u32 s%d, s%d, %d' % (sT0, sT0, (32 << 20) + slot * (16 << 20)))
        a('v_lshlrev_b32 v%d, 2, v%d' % (vTMP + 15, vLANE))
        for i in range(n):
            a('buffer_store_dword v%d, v%d, %s, s%d offen offset:%d' % (reg + i, vTMP + 15, sr(SWS, 4), sT0, 256 * (i % 16)))
            if i % 16 == 15:
                a('s_add_u32 s%d, s%d, 4096' % (sT0, sT0))
        a('s_waitcnt vmcnt(0)')

    def k1(self):
        a = Asm()
        vm = VM()
        END = 'K1_END'
        self.decode(a, END)
        a('s_mul_i32 s%d, s%d, 10' % (sT2, sT2))
        a('s_mul_i32 s%d, s%d, 20' % (sT3, sT3))
        a('s_add_u32 s%d, s%d, s%d' % (sT2, sT2, sT3))
        a('s_lshr_b32 s%d, s%d, 4' % (sT2, sT2))
        a('s_cmp_ge_u32 s%d, 5' % sT2)
        a('s_cselect_b32 s%d, 5, 0' % sT3)
        a('s_sub_u32 s%d, s%d, s%d' % (sT2, sT2, sT3))
        a('s_mul_i32 s%d, s%d, 24' % (sT0, sBR))
        a('s_add_u32 s66, s0, s%d' % sT0)
        a('s_addc_u32 s67, s1, 0')
        a('s_load_dwordx4 s[44:47], s[66:67], 0')
        a('s_load_dwordx4 s[48:51], s[0:1], 64')
        a('s_load_dwordx2 s[52:53], s[0:1], 40')
        a('s_memrealtime s[54:55]')
        a('s_mul_i32 s%d, s%d, %d' % (sT0, sRB, 128 * 1280))
        a('s_mul_i32 s%d, s%d, %d' % (sT1, sWAVE, 16 * 1280))
        a('s_add_u32 s%d, s%d, s%d' % (sT0, sT0, sT1))
        a('s_mul_i32 s%d, s%d, 160' % (sT1, sHG))
        for u in range(5):
            a('s_lshl_b32 s%d, s%d, 8' % (sXO + u, sT2))
            a('s_add_u32 s%d, s%d, s%d' % (sXO + u, sXO + u, sT0))
            a('s_mul_i32 s%d, s%d, %d' % (sWO + u, sT2, 128 * 3840))
            a('s_add_u32 s%d, s%d, s%d' % (sWO + u, sWO + u, sT1))
            if u < 4:
                a('s_add_u32 s%d, s%d, 1' % (sT2, sT2))
                a('s_cmp_ge_u32 s%d, 5' % sT2)
                a('s_cselect_b32 s%d, 0, s%d' % (sT2, sT2))
        a('s_mul_i32 s%d, s%d, 2560' % (sWL, sWAVE))
        a('v_bfe_u32 v%d, v%d, 2, 2' % (vTMP, vLANE))
        a('v_mul_u32_u24 v%d, 5120, v%d' % (vTMP, vTMP))
        a('v_lshrrev_b32 v%d, 4, v%d' % (vTMP + 1, vLANE))
        a('v_lshl_add_u32 v%d, v%d, 6, v%d' % (vTMP, vTMP + 1, vTMP))
        a('v_and_b32 v%d, 3, v%d' % (vTMP + 1, vLANE))
        a('v_lshl_add_u32 v%d, v%d, 4, v%d' % (vXO, vTMP + 1, vTMP))
        a('s_mul_i32 s%d, s%d, %d' % (sT0, sWAVE, 4 * 3840))
        for i in range(3):
            a('v_add_u32 v%d, %d, v%d' % (vTMP, 64 * i, vLANE))
            self.div10(a, vTMP, vTMP + 1, vTMP + 2)
            a('v_lshrrev_b32 v%d, 2, v%d' % (vTMP + 3, vTMP + 1))
            a('v_mul_u32_u24 v%d, %d, v%d' % (vTMP + 3, 32 * 3840, vTMP + 3))
            a('v_and_b32 v%d, 3, v%d' % (vTMP + 1, vTMP + 1))
            a('v_mul_u32_u24 v%d, 3840, v%d' % (vTMP + 1, vTMP + 1))
            a('v_lshl_add_u32 v%d, v%d, 4, v%d' % (vTMP + 2, vTMP + 2, vTMP + 3))
            a('v_add3_u32 v%d, v%d, v%d, s%d' % (vWD + i, vTMP + 1, vTMP + 2, sT0))
        a('s_waitcnt lgkmcnt(0)')
        self.srd(a, SX, 44, 2621440)
        self.srd(a, SW, 46, 2457600)
        self.srd(a, SDBG, 48, 256)
        self.srd(a, SWS, 50, (128 << 20) if self.dbg else WS_BYTES)
        self.srd(a, SAUX, 52, 25600)
        self.issue_stage(a, vm, 0)
        self.issue_x(a, vm, 0)
        Ln = self.lab('Lnonce')
        a('s_or_b32 s%d, s54, 1' % sNONCE)
        a('s_cmp_lg_u32 s%d, 0' % sWAVE)
        a('s_cbranch_scc1 %s' % Ln)
        a('v_mov_b32 v%d, s%d' % (vK, sNONCE))
        a('v_mov_b32 v%d, 0' % (vK + 1))
        a('s_mov_b64 exec, 1')
        a('buffer_atomic_cmpswap %s, v%d, %s, 0 offen sc0 sc1' % (vr(vK, 2), vK + 1, sr(SDBG, 4)))
        a('s_mov_b64 exec, -1')
        a.label(Ln)
        for u in range(1, 5):
            a('s_barrier')
            self.issue_stage(a, vm, u)
            self.issue_x(a, vm, u)
        a('s_barrier')
        self.tr_base(a)
        for h in (1, 2, 3):
            self.mask(a, sGE + 2 * (h - 1), (~0 << (16 * h)))
        for h in (0, 1, 2):
            self.mask(a, sLE + 2 * h, (1 << (16 * (h + 1))) - 1)
        a('s_mov_b32 s%d, 0x%x' % (sL2E, f2u(LOG2E)))
        a('s_mov_b32 s%d, 0x%x' % (sL2E + 1, f2u(LOG2E)))
        a('s_cmp_eq_u32 s%d, 1' % sBR)
        a('s_cbranch_scc1 K1_B')
        import copy
        vmb = copy.deepcopy(vm)
        self.k1_a(a, vm, END)
        a.label('K1_B')
        self.k1_b(a, vmb, END)
        a.label(END)
        a('s_endpgm')
        return a.finish()

    def get_nonce(self, a):
        a('v_readfirstlane_b32 s%d, v%d' % (sT0, vK))
        a('s_cmp_eq_u32 s%d, 0' % sT0)
        a('s_cselect_b32 s%d, s%d, s%d' % (sNONCE, sNONCE, sT0))

    def store_o(self, a, reg):
        a('s_lshl_b32 s%d, s%d, 4' % (sT0, sBR))
        a('s_add_u32 s%d, s%d, s%d' % (sT0, sT0, sRB))
        a('s_lshl_b32 s%d, s%d, 3' % (sT0, sT0))
        a('s_add_u32 s%d, s%d, s%d' % (sT0, sT0, sWAVE))
        a('s_lshl_b32 s%d, s%d, 3' % (sT0, sT0))
        a('s_add_u32 s%d, s%d, s%d' % (sT0, sT0, sHG))
        a('s_mul_i32 s%d, s%d, 2560' % (sT0, sT0))
        a('v_lshlrev_b32 v%d, 4, v%d' % (vTMP + 14, vLANE))
        a('v_lshlrev_b32 v%d, 3, v%d' % (vTMP + 15, vLANE))
        a('buffer_store_dwordx4 %s, v%d, %s, s%d offen sc1' % (vr(reg), vTMP + 14, sr(SWS, 4), sT0))
        a('buffer_store_dwordx4 %s, v%d, %s, s%d offen offset:1024 sc1' % (vr(reg + 4), vTMP + 14, sr(SWS, 4), sT0))
        a('buffer_store_dwordx2 %s, v%d, %s, s%d offen offset:2048 sc1' % (vr(reg + 8, 2), vTMP + 15, sr(SWS, 4), sT0))

    def v_to_lds(self, a, reg, vaddr, base):
        for ct in range(5):
            a('ds_write_b64 v%d, %s offset:%d' % (vaddr, vr(reg + 2 * ct, 2), base + 32 * ct))

    def select_pack(self, a, lo, hi, dst, scale=None):
        for ct in range(5):
            parts = []
            if ct <= 3:
                parts.append((lo[ct], None if ct == 0 else sGE + 2 * (ct - 1), ct))
            if ct >= 1:
                parts.append((hi[ct - 1], None if ct == 4 else sLE + 2 * (ct - 1), ct - 1))
            for acc, m, h in parts:
                if m is not None:
                    a('s_mov_b64 exec, %s' % sr(m))
                a('v_cvt_pk_bf16_f32 v%d, v%d, v%d' % (dst + 2 * ct, acc, acc + 1))
                a('v_cvt_pk_bf16_f32 v%d, v%d, v%d' % (dst + 2 * ct + 1, acc + 2, acc + 3))
            a('s_mov_b64 exec, -1')

    def k1_a(self, a, vm, END):
        self.issue_stage(a, vm, 5)
        self.issue_stage(a, vm, 6)
        vKW = vMISC
        vVW = vMISC + 1
        vBC = vMISC + 2
        vBP = vMISC + 6
        vMC = vMISC + 10
        vVP = vMISC + 14
        vVC = vMISC + 15
        vPOS = vEN
        vG4 = vEN + 1
        a('v_lshl_add_u32 v%d, v%d, 3, s%d' % (vKW, vLANE, sWL))
        a('v_and_b32 v%d, 15, v%d' % (vPOS, vLANE))
        a('v_lshrrev_b32 v%d, 4, v%d' % (vG4, vLANE))
        a('v_mul_u32_u24 v%d, 160, v%d' % (vVW, vPOS))
        a('v_lshl_add_u32 v%d, v%d, 3, v%d' % (vVW, vG4, vVW))
        a('v_lshlrev_b32 v%d, 2, v%d' % (vG4, vG4))
        NEG = f2u(-1e30)
        a('v_mov_b32 v%d, 0x%x' % (vTMP, NEG))
        for r in range(4):
            a('v_sub_u32 v%d, v%d, v%d' % (vTMP + 1, vPOS, vG4))
            a('v_subrev_u32 v%d, %d, v%d' % (vTMP + 1, r, vTMP + 1))
            a('v_and_b32 v%d, 0x80000001, v%d' % (vTMP + 2, vTMP + 1))
            a('v_cmp_eq_u32 vcc, 0, v%d' % (vTMP + 2))
            a('v_cndmask_b32_e64 v%d, v%d, 0, vcc' % (vBC + r, vTMP))
            a('v_cmp_eq_u32 vcc, 0x80000000, v%d' % (vTMP + 2))
            a('v_cndmask_b32_e64 v%d, v%d, 0, vcc' % (vBP + r, vTMP))
        a('v_and_b32 v%d, 1, v%d' % (vTMP + 1, vPOS))
        a('v_lshlrev_b32 v%d, 4, v%d' % (vTMP + 2, vTMP + 1))
        a('v_mov_b32 v%d, 0xffff' % (vTMP + 3))
        a('v_lshlrev_b32 v%d, v%d, v%d' % (vTMP + 3, vTMP + 2, vTMP + 3))
        for j in range(2):
            a('v_add_u32 v%d, %d, v%d' % (vTMP + 2, 2 * j, vG4))
            a('v_cmp_le_u32 vcc, v%d, v%d' % (vTMP + 2, vPOS))
            a('v_cndmask_b32_e64 v%d, 0, v%d, vcc' % (vMC + 2 + j, vTMP + 3))
            a('v_cndmask_b32_e64 v%d, v%d, 0, vcc' % (vMC + j, vTMP + 3))
        a('s_add_u32 s%d, s%d, %d' % (sT0, sWL, VBUF))
        a('v_add_u32 v%d, s%d, v%d' % (vVC, sT0, vTR))
        a('s_sub_u32 s%d, s%d, 2560' % (sT0, sT0))
        a('s_cmp_eq_u32 s%d, 0' % sWAVE)
        a('s_cselect_b32 s%d, %d, s%d' % (sT0, HALOV, sT0))
        a('v_add_u32 v%d, s%d, v%d' % (vVP, sT0, vTR))

        self.gemm_pass(a, vm, 0, extra={('post', 1): lambda: self.get_nonce(a)})
        self.stamp(a, 1)
        self.pack_acc(a, vK)
        a('v_add_u32 v%d, %d, v%d' % (vKW, KBUF, vKW))
        for ct in range(5):
            a('ds_write_b64 v%d, %s offset:%d' % (vKW, vr(vK + 2 * ct, 2), 512 * ct))
        self.gemm_pass(a, vm, 1)
        self.stamp(a, 2)
        self.pack_acc(a, vV)
        a('v_add_u32 v%d, s%d, v%d' % (vTMP, sWL, vVW))
        self.v_to_lds(a, vV, vTMP, VBUF)
        Lh = self.lab('Lhalo')
        a('s_cmp_lg_u32 s%d, 7' % sWAVE)
        a('s_cbranch_scc1 %s' % Lh)
        a('s_lshl_b32 s%d, s%d, 3' % (sT0, sRB))
        a('s_add_u32 s%d, s%d, s%d' % (sT0, sT0, sHG))
        a('s_mul_i32 s%d, s%d, 5120' % (sT0, sT0))
        a('s_add_u32 s%d, s%d, %d' % (sT0, sT0, WS_HALO))
        a('v_lshlrev_b32 v%d, 4, v%d' % (vTMP + 1, vLANE))
        for i in range(5):
            if i == 4:
                a('s_add_u32 s%d, s%d, 4096' % (sT0, sT0))
            a('buffer_store_dwordx4 %s, v%d, %s, s%d offen offset:%d sc1' % (
                vr(vK + 4 * i), vTMP + 1, sr(SWS, 4), sT0, (1024 * i) % 4096))
        a.label(Lh)

        def flag_halo():
            a('s_lshl_b32 s%d, s%d, 3' % (sT1, sRB))
            a('s_add_u32 s%d, s%d, s%d' % (sT1, sT1, sHG))
            a('s_lshl_b32 s%d, s%d, 7' % (sT1, sT1))
            a('s_add_u32 s%d, s%d, %d' % (sT1, sT1, WS_FLAG))
            self.set_flag(a, sT1)

        self.gemm_pass(a, vm, 2, extra={('pre', 13): lambda: a('s_waitcnt vmcnt(0)'), ('post', 13): flag_halo})
        self.stamp(a, 3)
        self.pack_acc(a, vQ)
        vKP = vX
        vVO = vX + 20
        vQM = vX + 40
        vSP = vX + 56
        vSC = vACC
        Lw0 = self.lab('Lw0')
        Lw1 = self.lab('Lw1')
        Lz = self.lab('Lz')
        Lz2 = self.lab('Lz2')
        a('s_cmp_eq_u32 s%d, 0' % sWAVE)
        a('s_cbranch_scc1 %s' % Lw0)
        a('v_subrev_u32 v%d, 2560, v%d' % (vTMP, vKW))
        for ct in range(5):
            a('ds_read_b64 %s, v%d offset:%d' % (vr(vKP + 2 * ct, 2), vTMP, 512 * ct))
        a('s_branch %s' % Lw1)
        a.label(Lw0)
        a('s_cmp_eq_u32 s%d, 0' % sRB)
        a('s_cbranch_scc1 %s' % Lz)
        a('s_lshl_b32 s%d, s%d, 3' % (sT1, sRB))
        a('s_add_u32 s%d, s%d, s%d' % (sT1, sT1, sHG))
        a('s_sub_u32 s%d, s%d, 8' % (sT1, sT1))
        a('s_lshl_b32 s%d, s%d, 7' % (sT2, sT1))
        a('s_add_u32 s%d, s%d, %d' % (sT2, sT2, WS_FLAG))
        a('v_mov_b32 v%d, 0' % vTMP)
        self.poll(a, vTMP, vTMP + 1, 1, 's%d' % sT2)
        a('s_mul_i32 s%d, s%d, 5120' % (sT0, sT1))
        a('s_add_u32 s%d, s%d, %d' % (sT0, sT0, WS_HALO))
        a('v_lshlrev_b32 v%d, 4, v%d' % (vTMP + 1, vLANE))
        for i in range(5):
            if i == 4:
                a('s_add_u32 s%d, s%d, 4096' % (sT0, sT0))
            a('buffer_load_dwordx4 %s, v%d, %s, s%d offen offset:%d sc1' % (
                vr(vKP + 4 * i), vTMP + 1, sr(SWS, 4), sT0, (1024 * i) % 4096))
        a('s_waitcnt vmcnt(0)')
        a('s_branch %s' % Lz2)
        a.label(Lz)
        for i in range(20):
            a('v_mov_b32 v%d, 0' % (vKP + i))
        for r in range(4):
            a('v_mov_b32 v%d, 0x%x' % (vBP + r, NEG))
        a.label(Lz2)
        a('v_add_u32 v%d, %d, v%d' % (vTMP, HALOV, vVW))
        self.v_to_lds(a, vKP + 10, vTMP, 0)
        a('s_waitcnt lgkmcnt(0)')
        a.label(Lw1)
        for ct in range(5):
            a('ds_read_b64_tr_b16 %s, v%d offset:%d' % (vr(vVO + 4 * ct, 2), vVP, 32 * ct))
            a('ds_read_b64_tr_b16 %s, v%d offset:%d' % (vr(vVO + 4 * ct + 2, 2), vVC, 32 * ct))
        for h in range(4):
            for i in range(2):
                if h == 0:
                    a('v_mov_b32 v%d, v%d' % (vQM + i, vQ + i))
                else:
                    a('v_cndmask_b32_e64 v%d, 0, v%d, %s' % (vQM + 4 * h + i, vQ + 2 * h + i, sr(sGE + 2 * (h - 1))))
            for i in range(2):
                if h == 3:
                    a('v_mov_b32 v%d, v%d' % (vQM + 14 + i, vQ + 8 + i))
                else:
                    a('v_cndmask_b32_e64 v%d, 0, v%d, %s' % (vQM + 4 * h + 2 + i, vQ + 2 * h + 2 + i, sr(sLE + 2 * h)))
        for h in range(4):
            a('v_mfma_f32_16x16x32_bf16 %s, %s, %s, %s' % (vr(vSC + 4 * h), vr(vK + 2 * h), vr(vQM + 4 * h), vr(vBC)))
        a('s_waitcnt lgkmcnt(10)')
        for h in range(4):
            a('v_mfma_f32_16x16x32_bf16 %s, %s, %s, %s' % (vr(vSP + 4 * h), vr(vKP + 2 * h), vr(vQM + 4 * h), vr(vBP)))
        vE = vTMP
        vMX = vTMP + 8
        vZ = vTMP + 12
        vO4 = vFR
        for h in range(4):
            for j in range(2):
                a('v_max3_f32 v%d, v%d, v%d, v%d' % (vE + 2 * h + j, vSC + 4 * h + 2 * j, vSC + 4 * h + 2 * j + 1, vSP + 4 * h + 2 * j))
        for h in range(4):
            for j in range(2):
                a('v_max_f32 v%d, v%d, v%d' % (vE + 2 * h + j, vE + 2 * h + j, vSP + 4 * h + 2 * j + 1))
        for h in range(4):
            a('v_max_f32 v%d, v%d, v%d' % (vMX + h, vE + 2 * h, vE + 2 * h + 1))
        self.reduce4(a, 'v_max_f32', [vMX + h for h in range(4)], vZ)
        C = f2u(SCALE * LOG2E)
        a('s_mov_b32 s%d, 0x%x' % (sT0, C))
        a('v_mul_f32 v%d, s%d, v%d' % (vZ, sT0, vZ))
        self.bcast4(a, vZ, [vO4 + h for h in range(4)])
        for h in range(4):
            for j in range(2):
                a('v_fma_f32 v%d, v%d, s%d, -v%d' % (vE + 2 * h + j, vE + 2 * h + j, sT0, vO4 + h))
        for i in range(8):
            a('v_exp_f32 v%d, v%d' % (vE + i, vE + i))
        for h in range(4):
            a('v_add_f32 v%d, v%d, v%d' % (vMX + h, vE + 2 * h, vE + 2 * h + 1))
        self.reduce4(a, 'v_add_f32', [vMX + h for h in range(4)], vZ)
        a('v_rcp_f32 v%d, v%d' % (vZ, vZ))
        self.bcast4(a, vZ, [vO4 + h for h in range(4)])
        for h in range(4):
            for j in range(2):
                a('v_mul_f32 v%d, v%d, v%d' % (vE + 2 * h + j, vE + 2 * h + j, vO4 + h))
        for i in range(8):
            a('v_cvt_pk_bf16_f32 v%d, v%d, v%d' % (vE + i, vE + i, vE + i))
        vP = vQM
        for h in range(4):
            for j in range(2):
                a('v_and_b32 v%d, v%d, v%d' % (vP + 4 * h + j, vMC + j, vE + 2 * h + j))
                a('v_and_b32 v%d, v%d, v%d' % (vP + 4 * h + 2 + j, vMC + 2 + j, vE + 2 * h + j))
        a('s_waitcnt lgkmcnt(0)')
        lo = [vSC + 4 * h for h in range(4)]
        hi = [vSP + 4 * h for h in range(4)]
        for h in range(4):
            a('v_mfma_f32_16x16x32_bf16 %s, %s, %s, 0' % (vr(lo[h]), vr(vVO + 4 * h), vr(vP + 4 * h)))
            a('v_mfma_f32_16x16x32_bf16 %s, %s, %s, 0' % (vr(hi[h]), vr(vVO + 4 * h + 4), vr(vP + 4 * h)))
        self.select_pack(a, lo, hi, vQ)
        self.store_o(a, vQ)
        self.stamp(a, 4)
        a('s_waitcnt vmcnt(0)')
        self.stamp(a, 5)
        self.stamp_out(a, 6, WS_DBG)
        a('s_branch %s' % END)

    def features(self, a, src, EP, EN):
        DA = vACC
        DB = vACC + 16
        for h in range(4):
            a('v_mfma_f32_16x16x32_bf16 %s, %s, %s, 0' % (vr(DA + 4 * h), vr(vWA + 4 * h), vr(src + 2 * h)))
        for i in range(3):
            a('v_mfma_f32_16x16x32_bf16 %s, %s, %s, %s' % (vr(DB), vr(vWB + 4 * i), vr(src + 4 * i), '0' if i == 0 else vr(DB)))
        MX = vTMP
        MN = vTMP + 5
        ZX, ZN = vTMP + 10, vTMP + 11
        BX = vFR
        BN = vFR + 4
        for h in range(5):
            a('v_max3_f32 v%d, v%d, v%d, v%d' % (MX + h, DA + 4 * h, DA + 4 * h + 1, DA + 4 * h + 2))
            a('v_min3_f32 v%d, v%d, v%d, v%d' % (MN + h, DA + 4 * h, DA + 4 * h + 1, DA + 4 * h + 2))
        for h in range(5):
            a('v_max_f32 v%d, v%d, v%d' % (MX + h, MX + h, DA + 4 * h + 3))
            a('v_min_f32 v%d, v%d, v%d' % (MN + h, MN + h, DA + 4 * h + 3))
        self.reduce4(a, 'v_max_f32', [MX + h for h in range(4)], ZX)
        self.reduce4(a, 'v_min_f32', [MN + h for h in range(4)], ZN)
        a('v_max_f32 v%d, v%d, v%d' % (ZX, ZX, MX + 4))
        a('v_min_f32 v%d, v%d, v%d' % (ZN, ZN, MN + 4))
        a('v_mul_f32 v%d, s%d, v%d' % (ZX, sL2E, ZX))
        a('v_mul_f32 v%d, s%d, v%d' % (ZN, sL2E, ZN))
        self.bcast4(a, ZX, [BX + h for h in range(4)])
        self.bcast4(a, ZN, [BN + h for h in range(4)])
        for h in range(5):
            mx = BX + h if h < 4 else ZX
            mn = BN + h if h < 4 else ZN
            for r in range(4):
                a('v_fma_f32 v%d, v%d, s%d, -v%d' % (EP + 4 * h + r, DA + 4 * h + r, sL2E, mx))
                a('v_fma_f32 v%d, -v%d, s%d, v%d' % (EN + 4 * h + r, DA + 4 * h + r, sL2E, mn))
        for i in range(20):
            a('v_exp_f32 v%d, v%d' % (EP + i, EP + i))
            a('v_exp_f32 v%d, v%d' % (EN + i, EN + i))
        for base, S in ((EP, MX), (EN, MN)):
            for h in range(5):
                a('v_add_f32 v%d, v%d, v%d' % (S + h, base + 4 * h, base + 4 * h + 1))
                a('v_add_f32 v%d, v%d, v%d' % (DA + h, base + 4 * h + 2, base + 4 * h + 3))
            for h in range(5):
                a('v_add_f32 v%d, v%d, v%d' % (S + h, S + h, DA + h))
        self.reduce4(a, 'v_add_f32', [MX + h for h in range(4)], ZX)
        self.reduce4(a, 'v_add_f32', [MN + h for h in range(4)], ZN)
        a('v_add_f32 v%d, v%d, v%d' % (ZX, ZX, MX + 4))
        a('v_add_f32 v%d, v%d, v%d' % (ZN, ZN, MN + 4))
        a('v_rcp_f32 v%d, v%d' % (ZX, ZX))
        a('v_rcp_f32 v%d, v%d' % (ZN, ZN))
        self.bcast4(a, ZX, [BX + h for h in range(4)])
        self.bcast4(a, ZN, [BN + h for h in range(4)])
        for h in range(5):
            sx = BX + h if h < 4 else ZX
            sn = BN + h if h < 4 else ZN
            for r in range(4):
                a('v_mul_f32 v%d, v%d, v%d' % (EP + 4 * h + r, EP + 4 * h + r, sx))
                a('v_mul_f32 v%d, v%d, v%d' % (EN + 4 * h + r, EN + 4 * h + r, sn))
        for h in range(5):
            for i in range(2):
                a('v_cvt_pk_bf16_f32 v%d, v%d, v%d' % (vPHI + 4 * h + i, EP + 4 * h + 2 * i, EP + 4 * h + 2 * i + 1))
                a('v_cvt_pk_bf16_f32 v%d, v%d, v%d' % (vPHI + 4 * h + 2 + i, EN + 4 * h + 2 * i, EN + 4 * h + 2 * i + 1))

    def k1_b(self, a, vm, END):
        a('s_and_b32 s%d, s%d, 3' % (sT1, sWAVE))
        a('s_lshl_b32 s%d, s%d, 10' % (sT1, sT1))
        a('s_mul_i32 s%d, s%d, 3200' % (sT0, sHG))
        a('s_add_u32 s%d, s%d, s%d' % (sT0, sT0, sT1))
        a('s_add_u32 m0, s%d, %d' % (sT1, WPHI))
        a('v_lshlrev_b32 v%d, 4, v%d' % (vTMP, vLANE))
        a('buffer_load_dwordx4 v%d, %s, s%d offen lds' % (vTMP, sr(SAUX, 4), sT0))
        vm.add('WPHI')
        self.issue_stage(a, vm, 5)
        self.issue_stage(a, vm, 6)
        vVW = vMISC
        vPB = vMISC + 1
        vRA = vMISC + 2
        vRB = vMISC + 3
        vRV = vMISC + 4
        vSO = vMISC + 5
        vGA = vMISC + 11
        vGL = vMISC + 13
        vPOS = vEN
        vG = vEN + 1
        a('v_and_b32 v%d, 15, v%d' % (vPOS, vLANE))
        a('v_lshrrev_b32 v%d, 4, v%d' % (vG, vLANE))
        a('v_mul_u32_u24 v%d, 160, v%d' % (vVW, vPOS))
        a('v_add_u32 v%d, s%d, v%d' % (vVW, sWL, vVW))
        a('v_and_b32 v%d, 1, v%d' % (vTMP, vG))
        a('v_mul_u32_u24 v%d, 80, v%d' % (vTMP, vTMP))
        a('v_add3_u32 v%d, v%d, v%d, 64' % (vPB, vVW, vTMP))
        a('v_mov_b32 v%d, %d' % (vTMP, PHI0))
        a('v_mov_b32 v%d, %d' % (vTMP + 1, PHI1))
        a('v_cndmask_b32_e64 v%d, v%d, v%d, %s' % (vTMP, vTMP, vTMP + 1, sr(sGE + 2)))
        a('v_add_u32 v%d, v%d, v%d' % (vPB, vPB, vTMP))
        a('v_lshl_add_u32 v%d, v%d, 3, v%d' % (vVW, vG, vVW))
        sH, sSG = sT2, sT3
        a('s_and_b32 s%d, s%d, 3' % (sH, sWAVE))
        a('s_lshr_b32 s%d, s%d, 2' % (sSG, sWAVE))
        a('s_mov_b32 s%d, %d' % (sT0, PHI0))
        a('s_cmp_ge_u32 s%d, 2' % sH)
        a('s_cselect_b32 s%d, %d, s%d' % (sT0, PHI1, sT0))
        a('s_and_b32 s%d, s%d, 1' % (sT1, sH))
        a('s_mul_i32 s%d, s%d, 80' % (sT1, sT1))
        a('s_add_u32 s%d, s%d, s%d' % (sT0, sT0, sT1))
        a('s_lshl_b32 s%d, s%d, 5' % (sT1, sSG))
        a('s_add_u32 s%d, s%d, s%d' % (sT0, sT0, sT1))
        a('v_add_u32 v%d, s%d, v%d' % (vRA, sT0, vTR))
        a('v_lshrrev_b32 v%d, 2, v%d' % (vRB, vLANE))
        a('v_mul_u32_u24 v%d, 160, v%d' % (vRB, vRB))
        a('v_and_b32 v%d, 1, v%d' % (vTMP, vLANE))
        a('v_mul_u32_u24 v%d, 80, v%d' % (vTMP, vTMP))
        a('v_add_u32 v%d, v%d, v%d' % (vRB, vRB, vTMP))
        a('v_and_b32 v%d, 2, v%d' % (vTMP, vLANE))
        a('v_cmp_eq_u32 vcc, 0, v%d' % vTMP)
        a('v_mov_b32 v%d, %d' % (vTMP + 2, PHI0))
        a('v_cndmask_b32 v%d, v%d, v%d, vcc' % (vTMP, vTMP + 1, vTMP + 2))
        a('s_lshl_b32 s%d, s%d, 3' % (sT1, sSG))
        a('s_add_u32 s%d, s%d, 64' % (sT1, sT1))
        a('v_add3_u32 v%d, v%d, v%d, s%d' % (vRB, vRB, vTMP, sT1))
        a('s_lshl_b32 s%d, s%d, 5' % (sT1, sH))
        a('s_add_u32 s%d, s%d, %d' % (sT1, sT1, VBUF))
        a('v_add_u32 v%d, s%d, v%d' % (vRV, sT1, vTR))
        BAD = 0x7ffffff0
        a('v_mov_b32 v%d, 0x%x' % (vTMP + 4, BAD))
        a('s_lshl_b32 s%d, s%d, 2' % (sT0, sH))
        a('s_mul_i32 s%d, s%d, 5' % (sT1, sSG))
        a('s_add_u32 s%d, s%d, s%d' % (sT1, sT1, sH))
        a('s_lshl_b32 s%d, s%d, 10' % (sT1, sT1))
        a('v_lshl_add_u32 v%d, v%d, 4, s%d' % (vTMP, vLANE, sT1))
        a('v_cmp_le_u32 %s, s%d, v%d' % (sr(sM), sT0, vPOS))
        a('v_cndmask_b32_e64 v%d, v%d, v%d, %s' % (vSO, vTMP + 4, vTMP, sr(sM)))
        a('v_add_u32 v%d, 1024, v%d' % (vTMP, vTMP))
        a('s_add_u32 s%d, s%d, 4' % (sT0, sT0))
        a('v_cmp_gt_u32 vcc, s%d, v%d' % (sT0, vPOS))
        a('v_cndmask_b32 v%d, v%d, v%d, vcc' % (vSO + 1, vTMP + 4, vTMP))
        a('s_lshl_b32 s%d, s%d, 6' % (sT1, sWAVE))
        a('s_add_u32 s%d, s%d, %d' % (sT1, sT1, REC_ZA))
        a('v_lshl_add_u32 v%d, v%d, 4, s%d' % (vTMP, vG, sT1))
        a('v_cmp_eq_u32 %s, 0, v%d' % (sr(sM2), vPOS))
        a('v_cndmask_b32_e64 v%d, v%d, v%d, %s' % (vSO + 2, vTMP + 4, vTMP, sr(sM2)))
        a('v_mov_b32 v%d, s%d' % (vTMP + 1, sH))
        a('v_subrev_u32 v%d, 1, v%d' % (vTMP + 2, vTMP + 1))
        a('v_cndmask_b32_e64 v%d, v%d, v%d, %s' % (vTMP + 1, vTMP + 2, vTMP + 1, sr(sM)))
        a('v_cmp_eq_u32 vcc, v%d, v%d' % (vTMP + 1, vG))
        a('s_mul_i32 s%d, s%d, 1280' % (sT1, sSG))
        a('s_lshl_b32 s%d, s%d, 8' % (sT0, sH))
        a('s_add_u32 s%d, s%d, s%d' % (sT1, sT1, sT0))
        a('s_add_u32 s%d, s%d, %d' % (sT1, sT1, REC_KVB))
        a('v_lshl_add_u32 v%d, v%d, 4, s%d' % (vTMP, vPOS, sT1))
        a('v_cndmask_b32 v%d, v%d, v%d, vcc' % (vSO + 3, vTMP + 4, vTMP))
        a('v_add_u32 v%d, 256, v%d' % (vTMP, vTMP))
        a('s_cmp_eq_u32 s%d, 3' % sH)
        a('s_cselect_b32 s%d, 3, 8' % sT0)
        a('v_cmp_eq_u32 vcc, s%d, v%d' % (sT0, vG))
        a('v_cndmask_b32 v%d, v%d, v%d, vcc' % (vSO + 4, vTMP + 4, vTMP))
        a('s_lshl_b32 s%d, s%d, 6' % (sT1, sSG))
        a('s_add_u32 s%d, s%d, %d' % (sT1, sT1, REC_ZB))
        a('v_lshl_add_u32 v%d, v%d, 4, s%d' % (vTMP, vG, sT1))
        a('s_cmp_eq_u32 s%d, 0' % sH)
        a('s_cselect_b32 s%d, 0, 99' % sT0)
        a('v_cmp_eq_u32 vcc, s%d, v%d' % (sT0, vPOS))
        a('v_cndmask_b32 v%d, v%d, v%d, vcc' % (vSO + 5, vTMP + 4, vTMP))
        for i in range(2):
            U = vTMP
            a('s_lshl_b32 s%d, s%d, 6' % (sT0, sWAVE))
            a('s_add_u32 s%d, s%d, %d' % (sT0, sT0, 512 * i))
            a('v_add_u32 v%d, s%d, v%d' % (U, sT0, vLANE))
            a('v_lshlrev_b32 v%d, 4, v%d' % (U + 1, U))
            a('v_cmp_gt_u32 vcc, 840, v%d' % U)
            a('v_cndmask_b32 v%d, v%d, v%d, vcc' % (vGA + i, vTMP + 4, U + 1))
            a('v_mov_b32 v%d, 0' % (U + 2))
            a('v_mov_b32 v%d, 320' % (U + 3))
            a('v_mov_b32 v%d, %d' % (U + 5, KVOP))
            for st, cnt, lb in ((640, 80, OP_KVB), (800, 16, OP_ZA), (832, 4, OP_ZB)):
                a('v_cmp_le_u32 vcc, %d, v%d' % (st, U))
                a('v_mov_b32 v%d, %d' % (U + 6, st))
                a('v_cndmask_b32 v%d, v%d, v%d, vcc' % (U + 2, U + 2, U + 6))
                a('v_mov_b32 v%d, %d' % (U + 6, cnt))
                a('v_cndmask_b32 v%d, v%d, v%d, vcc' % (U + 3, U + 3, U + 6))
                a('v_mov_b32 v%d, %d' % (U + 6, KVOP + lb))
                a('v_cndmask_b32 v%d, v%d, v%d, vcc' % (U + 5, U + 5, U + 6))
            a('v_sub_u32 v%d, v%d, v%d' % (U + 2, U, U + 2))
            a('v_cmp_ge_u32 vcc, v%d, v%d' % (U + 2, U + 3))
            a('v_sub_u32 v%d, v%d, v%d' % (U + 6, U + 2, U + 3))
            a('v_cndmask_b32 v%d, v%d, v%d, vcc' % (U + 2, U + 2, U + 6))
            a('v_lshl_add_u32 v%d, v%d, 4, v%d' % (U + 5, U + 2, U + 5))
            a('v_add_u32 v%d, 8, v%d' % (U + 6, U + 5))
            a('v_cndmask_b32 v%d, v%d, v%d, vcc' % (vGL + i, U + 5, U + 6))
            if i == 1:
                a('v_cmp_gt_u32 vcc, 840, v%d' % U)
                a('v_and_b32 v%d, 1, v%d' % (U + 5, U))
                a('v_lshlrev_b32 v%d, 3, v%d' % (U + 5, U + 5))
                a('v_add_u32 v%d, %d, v%d' % (U + 5, KVOP + OP_ZERO, U + 5))
                a('v_cndmask_b32 v%d, v%d, v%d, vcc' % (vGL + i, U + 5, vGL + i))
        a('v_mov_b32 v%d, 0' % (vQ + 10))
        a('v_mov_b32 v%d, 0' % (vQ + 11))

        def wphi_ops():
            self.get_nonce(a)
            UA = vPHI
            UB = vPHI + 10
            A = vV
            a('v_lshrrev_b32 v%d, 2, v%d' % (A, vLANE))
            a('v_mul_u32_u24 v%d, 40, v%d' % (A, A))
            a('v_add_u32 v%d, %d, v%d' % (A, WPHI, A))
            a('v_and_b32 v%d, 3, v%d' % (A + 1, vLANE))
            a('v_lshl_add_u32 v%d, v%d, 3, v%d' % (A + 1, A + 1, A))
            for ct in range(5):
                a('ds_read_b64_tr_b16 %s, v%d offset:%d' % (vr(UA + 2 * ct, 2), A + 1, 640 * ct))
                a('ds_read_b64_tr_b16 %s, v%d offset:%d' % (vr(UB + 2 * ct, 2), A, 640 * ct + 32))
            a('s_waitcnt lgkmcnt(0)')
            for h in range(4):
                for i in range(2):
                    if h == 0:
                        a('v_mov_b32 v%d, v%d' % (vWA + i, UA + i))
                    else:
                        a('v_cndmask_b32_e64 v%d, 0, v%d, %s' % (vWA + 4 * h + i, UA + 2 * h + i, sr(sGE + 2 * (h - 1))))
                for i in range(2):
                    if h == 3:
                        a('v_mov_b32 v%d, v%d' % (vWA + 14 + i, UA + 8 + i))
                    else:
                        a('v_cndmask_b32_e64 v%d, 0, v%d, %s' % (vWA + 4 * h + 2 + i, UA + 2 * h + 2 + i, sr(sLE + 2 * h)))
            for ct in range(5):
                m = 0
                for l in range(64):
                    g, i = l >> 4, l & 15
                    hd = ct if g >= ct else ct - 1
                    if (i >> 2) == hd:
                        m |= 1 << l
                self.mask(a, sM, m)
                for i in range(2):
                    a('v_cndmask_b32_e64 v%d, 0, v%d, %s' % (vWB + 2 * ct + i, UB + 2 * ct + i, sr(sM)))
            a('v_mov_b32 v%d, 0' % (vWB + 10))
            a('v_mov_b32 v%d, 0' % (vWB + 11))

        self.gemm_pass(a, vm, 0, extra={('pre', 4): lambda: vm.wait(a, 'S4', 'X4', 'WPHI'), ('post', 4): wphi_ops})
        self.stamp(a, 1)
        self.pack_acc(a, vK)
        a('v_mov_b32 v%d, 0' % (vK + 10))
        a('v_mov_b32 v%d, 0' % (vK + 11))
        self.features(a, vK, vV, vEN)
        self.gemm_pass(a, vm, 1)
        self.stamp(a, 2)
        self.pack_acc(a, vV)
        a('s_barrier')
        self.v_to_lds(a, vV, vVW, VBUF)
        a('v_add_u32 v%d, %d, v%d' % (vTMP, PHI0, vVW))
        a('v_add_u32 v%d, %d, v%d' % (vTMP + 1, PHI1, vVW))
        for h in range(4):
            o = (h & 1) * 10
            a('ds_write2_b64 v%d, %s, %s offset0:%d offset1:%d' % (
                vTMP + (h >> 1), vr(vPHI + 4 * h, 2), vr(vPHI + 4 * h + 2, 2), o, o + 4))
        a('ds_write_b128 v%d, %s' % (vPB, vr(vPHI + 16)))
        a('s_waitcnt lgkmcnt(0)')
        a('s_barrier')
        ONE = vK
        for i in range(4):
            a('v_mov_b32 v%d, 0x3f803f80' % (ONE + i))
        KA = vACC
        B0 = vTMP
        B1 = vPHI
        self._kv_reads(a, B0, 0, vRA, vRB, vRV)
        self._kv_reads(a, B1, 5120, vRA, vRB, vRV)
        for ks in range(4):
            B = B0 if ks % 2 == 0 else B1
            a('s_waitcnt lgkmcnt(%d)' % (8 if ks < 3 else 0))
            c = lambda i: '0' if ks == 0 else vr(KA + 4 * i)
            a('v_mfma_f32_16x16x32_bf16 %s, %s, %s, %s' % (vr(KA + 0), vr(B), vr(B + 8), c(0)))
            a('v_mfma_f32_16x16x32_bf16 %s, %s, %s, %s' % (vr(KA + 4), vr(B), vr(B + 12), c(1)))
            a('v_mfma_f32_16x16x32_bf16 %s, %s, %s, %s' % (vr(KA + 8), vr(B), vr(ONE), c(2)))
            a('v_mfma_f32_16x16x32_bf16 %s, %s, %s, %s' % (vr(KA + 12), vr(B + 4), vr(B + 8), c(3)))
            a('v_mfma_f32_16x16x32_bf16 %s, %s, %s, %s' % (vr(KA + 16), vr(B + 4), vr(B + 12), c(4)))
            a('v_mfma_f32_16x16x32_bf16 %s, %s, %s, %s' % (vr(KA + 20), vr(B + 4), vr(ONE), c(5)))
            if ks + 2 < 4:
                self._kv_reads(a, B, (ks + 2) * 5120, vRA, vRB, vRV)
        a('s_lshl_b32 s%d, s%d, 4' % (sT0, sHG))
        a('s_add_u32 s%d, s%d, s%d' % (sT0, sT0, sRB))
        a('s_mul_i32 s%d, s%d, %d' % (sT0, sT0, KVP_REC))
        a('s_add_u32 s%d, s%d, %d' % (sT0, sT0, WS_KVP))
        for i in range(6):
            a('buffer_store_dwordx4 %s, v%d, %s, s%d offen sc1' % (vr(KA + 4 * i), vSO + i, sr(SWS, 4), sT0))
        vm.add('KVST', 6)
        self.stamp(a, 3)

        def flag_kv():
            a('s_lshl_b32 s%d, s%d, 4' % (sT1, sHG))
            a('s_add_u32 s%d, s%d, s%d' % (sT1, sT1, sRB))
            a('s_lshl_b32 s%d, s%d, 7' % (sT1, sT1))
            a('s_add_u32 s%d, s%d, %d' % (sT1, sT1, WS_FLAG + 128 * 128))
            self.set_flag(a, sT1)

        self.gemm_pass(a, vm, 2, extra={('pre', 13): lambda: a('s_waitcnt vmcnt(0)'), ('post', 13): flag_kv})
        self.stamp(a, 4)
        self.pack_acc(a, vQ)
        self.features(a, vQ, vX, vX + 20)
        self.stamp(a, 5)
        Lp = self.lab('Lp')
        a('s_cmp_lg_u32 s%d, 0' % sWAVE)
        a('s_cbranch_scc1 %s' % Lp)
        a('s_lshl_b32 s%d, s%d, 11' % (sT1, sHG))
        a('s_add_u32 s%d, s%d, %d' % (sT1, sT1, WS_FLAG + 128 * 128))
        a('v_lshlrev_b32 v%d, 7, v%d' % (vTMP, vLANE))
        self.poll(a, vTMP, vTMP + 1, 0xffff, 's%d' % sT1)
        a.label(Lp)
        a('s_barrier')
        self.stamp(a, 6)
        a('s_mul_i32 s%d, s%d, %d' % (sT0, sHG, 16 * KVP_REC))
        a('s_add_u32 s%d, s%d, %d' % (sT0, sT0, WS_KVP))
        G = vX
        regs1 = [vX + 64, vX + 68, vX + 72, vX + 76, vK, vK + 4, vK + 8, vK + 12, vK + 16, vWA, vWA + 4, vWA + 8,
                 vWA + 12, vWA + 16, vWA + 20, vWA + 24]
        for p in range(16):
            a('buffer_load_dwordx4 %s, v%d, %s, s%d offen sc1' % (vr(G + 4 * p), vGA, sr(SWS, 4), sT0))
            a('buffer_load_dwordx4 %s, v%d, %s, s%d offen sc1' % (vr(regs1[p]), vGA + 1, sr(SWS, 4), sT0))
            if p < 15:
                a('s_add_u32 s%d, s%d, %d' % (sT0, sT0, KVP_REC))
        for p in range(1, 16):
            a('s_waitcnt vmcnt(%d)' % (2 * (15 - p)))
            for (acc, src) in ((G, G + 4 * p), (regs1[0], regs1[p])):
                a('v_pk_add_f32 %s, %s, %s' % (vr(acc, 2), vr(acc, 2), vr(src, 2)))
                a('v_pk_add_f32 %s, %s, %s' % (vr(acc + 2, 2), vr(acc + 2, 2), vr(src + 2, 2)))
        for i, acc in enumerate((G, regs1[0])):
            a('v_cvt_pk_bf16_f32 v%d, v%d, v%d' % (acc, acc, acc + 1))
            a('v_cvt_pk_bf16_f32 v%d, v%d, v%d' % (acc + 1, acc + 2, acc + 3))
            a('ds_write_b64 v%d, %s' % (vGL + i, vr(acc, 2)))
        a('s_waitcnt lgkmcnt(0)')
        a('s_barrier')
        self.stamp(a, 7)
        KVA = vX
        KVB = vX + 20
        ZA = vX + 40
        ZB = vX + 56
        A = vTMP
        a('v_lshlrev_b32 v%d, 4, v%d' % (A, vLANE))
        for ct in range(5):
            a('ds_read_b128 %s, v%d offset:%d' % (vr(KVA + 4 * ct), A, KVOP + 1024 * ct))
        a('v_lshrrev_b32 v%d, 4, v%d' % (vG, vLANE))
        a('v_and_b32 v%d, 15, v%d' % (vPOS, vLANE))
        a('v_lshlrev_b32 v%d, 4, v%d' % (A + 1, vG))
        for h in range(4):
            a('ds_read_b128 %s, v%d offset:%d' % (vr(ZA + 4 * h), A + 1, KVOP + OP_ZA + 64 * h))
        a('v_lshlrev_b32 v%d, 4, v%d' % (A + 2, vPOS))
        for ct in range(5):
            m = 0
            for l in range(64):
                g, chl = l >> 4, l & 15
                if (16 * ct + chl) // 20 == g:
                    m |= 1 << l
            self.mask(a, sM, m)
            a('v_add_u32 v%d, %d, v%d' % (A + 3, OP_KVB + 256 * ct, A + 2))
            a('v_mov_b32 v%d, %d' % (A + 4, OP_ZERO))
            a('v_cndmask_b32_e64 v%d, v%d, v%d, %s' % (A + 5 + ct, A + 4, A + 3, sr(sM)))
            a('ds_read_b128 %s, v%d offset:%d' % (vr(KVB + 4 * ct), A + 5 + ct, KVOP))
        for h in range(4):
            self.mask(a, sM, 0xffff << (16 * h))
            a('v_mov_b32 v%d, %d' % (A + 3, OP_ZB + 16 * h))
            a('v_cndmask_b32_e64 v%d, v%d, v%d, %s' % (A + 10 + h, A + 4, A + 3, sr(sM)))
            a('ds_read_b128 %s, v%d offset:%d' % (vr(ZB + 4 * h), A + 10 + h, KVOP))
        a('s_waitcnt lgkmcnt(0)')
        NB = vK
        DEN = vWA
        lo = [vACC + 4 * h for h in range(4)]
        hi = [vACC + 16 + 4 * h for h in range(4)]
        for ct in range(5):
            a('v_mfma_f32_16x16x32_bf16 %s, %s, %s, 0' % (vr(NB + 4 * ct), vr(KVB + 4 * ct), vr(vPHI + 16)))
        for h in range(4):
            a('v_mfma_f32_16x16x32_bf16 %s, %s, %s, 0' % (vr(DEN + 4 * h), vr(ZA + 4 * h), vr(vPHI + 4 * h)))
        for h in range(4):
            a('v_mfma_f32_16x16x32_bf16 %s, %s, %s, %s' % (vr(DEN + 4 * h), vr(ZB + 4 * h), vr(vPHI + 16), vr(DEN + 4 * h)))
        for h in range(4):
            a('v_mfma_f32_16x16x32_bf16 %s, %s, %s, %s' % (vr(lo[h]), vr(KVA + 4 * h), vr(vPHI + 4 * h), vr(NB + 4 * h)))
            a('v_mfma_f32_16x16x32_bf16 %s, %s, %s, %s' % (vr(hi[h]), vr(KVA + 4 * h + 4), vr(vPHI + 4 * h), vr(NB + 4 * h + 4)))
        for h in range(4):
            a('v_add_f32 v%d, 0x%x, v%d' % (vTMP + h, f2u(1e-6), DEN + 4 * h))
        for h in range(4):
            a('v_rcp_f32 v%d, v%d' % (vTMP + h, vTMP + h))
        for h in range(4):
            for acc in (lo[h], hi[h]):
                for r in range(4):
                    a('v_mul_f32 v%d, v%d, v%d' % (acc + r, acc + r, vTMP + h))
        self.select_pack(a, lo, hi, vQ)
        self.store_o(a, vQ)
        self.stamp(a, 8)
        a('s_waitcnt vmcnt(0)')
        self.stamp(a, 9)
        self.stamp_out(a, 10, WS_DBG)

    def _kv_reads(self, a, B, o, vRA, vRB, vRV):
        a('ds_read_b64_tr_b16 %s, v%d offset:%d' % (vr(B, 2), vRA, o))
        a('ds_read_b64_tr_b16 %s, v%d offset:%d' % (vr(B + 2, 2), vRA, o + 2560))
        a('ds_read_b64_tr_b16 %s, v%d offset:%d' % (vr(B + 8, 2), vRV, o))
        a('ds_read_b64_tr_b16 %s, v%d offset:%d' % (vr(B + 10, 2), vRV, o + 2560))
        a('ds_read_b64_tr_b16 %s, v%d offset:%d' % (vr(B + 12, 2), vRV, o + 32))
        a('ds_read_b64_tr_b16 %s, v%d offset:%d' % (vr(B + 14, 2), vRV, o + 2560 + 32))
        a('ds_read_b64_tr_b16 %s, v%d offset:%d' % (vr(B + 4, 2), vRB, o))
        a('ds_read_b64_tr_b16 %s, v%d offset:%d' % (vr(B + 6, 2), vRB, o + 2560))

    def k2(self):
        a = Asm()
        vm = VM()
        END = 'K2_END'
        self.decode(a, END)
        a('s_and_b32 s%d, s%d, 3' % (sT2, sT2))
        a('s_lshl_b32 s%d, s%d, 5' % (sT0, sBR))
        a('s_add_u32 s66, s0, s%d' % sT0)
        a('s_addc_u32 s67, s1, 0')
        a('s_load_dwordx2 s[48:49], s[66:67], 16')
        a('s_load_dwordx2 s[50:51], s[0:1], 72')
        a('s_load_dwordx2 s[52:53], s[0:1], 56')
        a('s_mul_i32 s%d, s%d, 2560' % (sWL, sWAVE))
        vOO = vMISC
        for i in range(3):
            a('v_add_u32 v%d, %d, v%d' % (vTMP, 64 * i, vLANE))
            self.div10(a, vTMP, vTMP + 1, vTMP + 2)
            a('v_mul_u32_u24 v%d, 1280, v%d' % (vTMP + 1, vTMP + 1))
            a('v_lshl_add_u32 v%d, v%d, 4, v%d' % (vWD + i, vTMP + 2, vTMP + 1))
            a('v_add_u32 v%d, v%d, v%d' % (vOO + i, vWD + i, vTMP + 1))
        a('v_mov_b32 v%d, 0x7ffffff0' % vTMP)
        a('v_cmp_gt_u32 vcc, 32, v%d' % vLANE)
        a('v_cndmask_b32 v%d, v%d, v%d, vcc' % (vOO + 2, vTMP, vOO + 2))
        a('s_mul_i32 s%d, s%d, 10' % (sT0, sT2))
        a('s_add_u32 s%d, s%d, s%d' % (sT0, sT0, sWAVE))
        a('s_mul_i32 s%d, s%d, 160' % (sT1, sHG))
        for j in range(5):
            a('s_cmp_ge_u32 s%d, 40' % sT0)
            a('s_cselect_b32 s%d, 40, 0' % sT3)
            a('s_sub_u32 s%d, s%d, s%d' % (sT0, sT0, sT3))
            a('s_mul_i32 s%d, s%d, %d' % (sWO + j, sT0, 16 * 1280))
            a('s_add_u32 s%d, s%d, s%d' % (sWO + j, sWO + j, sT1))
            a('s_add_u32 s%d, s%d, 8' % (sT0, sT0))
        a('s_lshl_b32 s%d, s%d, 4' % (sT0, sBR))
        a('s_add_u32 s%d, s%d, s%d' % (sT0, sT0, sRB))
        a('s_lshl_b32 s%d, s%d, 3' % (sT0, sT0))
        a('s_add_u32 s%d, s%d, s%d' % (sT0, sT0, sWAVE))
        a('s_mul_i32 s%d, s%d, 20480' % (sT0, sT0))
        for P in range(4):
            a('s_add_u32 s%d, s%d, %d' % (sT1, sT2, P))
            a('s_and_b32 s%d, s%d, 3' % (sT1, sT1))
            a('s_mul_i32 s%d, s%d, 5120' % (sT1, sT1))
            a('s_add_u32 s%d, s%d, s%d' % (sXO + P, sT0, sT1))
        a('v_lshlrev_b32 v%d, 4, v%d' % (vXO, vLANE))
        a('v_lshlrev_b32 v%d, 3, v%d' % (vTMP + 8, vLANE))
        a('v_add_u32 v%d, 2560, v%d' % (vTMP + 9, vXO))
        a('v_add_u32 v%d, 2560, v%d' % (vTMP + 10, vTMP + 8))
        a('s_waitcnt lgkmcnt(0)')
        self.srd(a, SW, 48, 819200)
        self.srd(a, SWS, 50, WS_BYTES)
        self.srd(a, SOUT, 52, 5242880)

        def issue_o(P):
            b = vX + 20 * P
            a('buffer_load_dwordx4 %s, v%d, %s, s%d offen' % (vr(b), vXO, sr(SWS, 4), sXO + P))
            a('buffer_load_dwordx4 %s, v%d, %s, s%d offen offset:1024' % (vr(b + 4), vXO, sr(SWS, 4), sXO + P))
            a('buffer_load_dwordx4 %s, v%d, %s, s%d offen' % (vr(b + 8), vTMP + 9, sr(SWS, 4), sXO + P))
            a('buffer_load_dwordx4 %s, v%d, %s, s%d offen offset:1024' % (vr(b + 12), vTMP + 9, sr(SWS, 4), sXO + P))
            a('buffer_load_dwordx2 %s, v%d, %s, s%d offen offset:2048' % (vr(b + 16, 2), vTMP + 8, sr(SWS, 4), sXO + P))
            a('buffer_load_dwordx2 %s, v%d, %s, s%d offen offset:2048' % (vr(b + 18, 2), vTMP + 10, sr(SWS, 4), sXO + P))
            vm.add('O%d' % P, 6)

        for j in range(5):
            self.dma3(a, vm, 'S%d' % j, SW, sWO + j, j * SLOT)
            if j < 4:
                issue_o(j)
                a('s_barrier')
        self.tr_base(a)
        frags = []
        hooks = {}
        need_stage = {0: 1, 1: 2, 2: 3, 3: 4}
        for P in range(4):
            def hook(P=P):
                self.stamp(a, 'w%d' % P)
                vm.wait(a, 'S%d' % need_stage[P], 'O%d' % P)
                self.stamp(a, 'x%d' % P)
                a('s_barrier')
                self.stamp(a, 'b%d' % P)
                return None
            hooks[25 * P] = hook
            steps = [(160 * P, 160 * P + 16), (160 * P + 32, 160 * P + 48), (160 * P + 80, 160 * P + 96),
                     (160 * P + 112, 160 * P + 128), (160 * P + 64, 160 * P + 144)]
            for si, (r0, r1) in enumerate(steps):
                for ct in range(5):
                    frags.append((r0 * 160 + 32 * ct, r1 * 160 + 32 * ct, vX + 20 * P + 4 * si, vACC + 4 * ct,
                                  P == 0 and si == 0))
        self.stamp(a, 1)
        self.pipeline(a, frags, hooks)
        self.stamp(a, 2)
        self.out_store(a, vOO, 5 * SLOT)
        self.stamp(a, 3)
        a('s_waitcnt vmcnt(0)')
        self.stamp(a, 4)
        self.stamp_out(a, 5, WS_DBG + 65536)
        a.label(END)
        a('s_endpgm')
        return a.finish()

    def out_store(self, a, vOO, ldsbase):
        self.pack_acc(a, vQ)
        a('v_and_b32 v%d, 15, v%d' % (vTMP, vLANE))
        a('v_mul_u32_u24 v%d, 160, v%d' % (vTMP, vTMP))
        a('v_lshrrev_b32 v%d, 4, v%d' % (vTMP + 1, vLANE))
        a('v_lshl_add_u32 v%d, v%d, 3, v%d' % (vTMP, vTMP + 1, vTMP))
        a('s_add_u32 s%d, s%d, %d' % (sT0, sWL, ldsbase))
        a('v_add_u32 v%d, s%d, v%d' % (vTMP, sT0, vTMP))
        self.v_to_lds(a, vQ, vTMP, 0)
        a('v_lshl_add_u32 v%d, v%d, 4, s%d' % (vTMP + 1, vLANE, sT0))
        a('s_waitcnt lgkmcnt(0)')
        for i in range(3):
            a('ds_read_b128 %s, v%d offset:%d' % (vr(vX + 4 * i), vTMP + 1, 1024 * i))
        a('s_lshl_b32 s%d, s%d, 3' % (sT0, sRB))
        a('s_add_u32 s%d, s%d, s%d' % (sT0, sT0, sWAVE))
        a('s_mul_i32 s%d, s%d, %d' % (sT0, sT0, 16 * 2560))
        a('s_mul_i32 s%d, s%d, 1280' % (sT1, sBR))
        a('s_add_u32 s%d, s%d, s%d' % (sT0, sT0, sT1))
        a('s_mul_i32 s%d, s%d, 160' % (sT1, sHG))
        a('s_add_u32 s%d, s%d, s%d' % (sT0, sT0, sT1))
        for i in range(3):
            a('s_waitcnt lgkmcnt(%d)' % (2 - i))
            a('buffer_store_dwordx4 %s, v%d, %s, s%d offen' % (vr(vX + 4 * i), vOO + i, sr(SOUT, 4), sT0))


def build(path, stamps=False, dbg=False):
    g = Gen(stamps, dbg)
    hdr = open('cdna_kernels/%s.s.ref' % NAME).read().split('; Override')[0]
    txt = hdr
    txt += '; @launch kernel=qkv_kernel grid=(256,1,1) block=(512,1,1) lds=%d\n' % LDS_BYTES
    txt += '; @launch kernel=proj_kernel grid=(256,1,1) block=(512,1,1) lds=%d\n' % (6 * SLOT + 1024)
    txt += HEADER_FMT
    txt += kernel_open('qkv_kernel') + g.k1()
    txt += kernel_open('proj_kernel') + g.k2()
    txt += kernel_desc('qkv_kernel', 256, 256) + kernel_desc('proj_kernel', 256, 256)
    open(path, 'w').write(txt)


if __name__ == '__main__':
    build('k.s')
    build('k_st.s', stamps=True)
    build('k_st2.s', stamps=[0, 'w0', 'x0', 'b0', 'w1', 'x1', 'b1', 'w2', 'x2', 'b2', 'w3', 'x3', 'b3', 'w4', 'b4', 1])
    build('k_st3.s', stamps=[0, 1, 'w5', 'b5', 'w6', 'x6', 'b6', 'w7', 'x7', 'b7', 'w8', 'x8', 'b8', 'w9', 'b9', 2])
```

```python
import sys, copy, struct, json
from asmlib import *

NAME = 'concat_heads__sliding_local_dilated__linear_kernel_hedgehog__prompt'

WS_OF = 0
WS_HALO = 6 << 20
WS_KVP = 7 << 20
KVP_REC = 13568
WS_FLAG = 9 << 20
WS_DBG = 16 << 20
WS_BYTES = 32 << 20
REC_KVB, REC_ZA, REC_ZB = 10240, 12800, 13312

SLOT = 20480
R = [SLOT * i for i in range(8)]
LDS_BYTES = 163840
SREG = {0: 0, 1: 1, 2: 2, 3: 3, 4: 0, 5: 1, 6: 2, 7: 4, 8: 5, 9: 0, 10: 3, 11: 6, 12: 1, 13: 2, 14: 4}
XAREA = [R[4], R[6], R[4], R[6], R[4]]
WPHI = R[7] + 12288
WPHI2 = R[5] + 8192
NONCE_LDS = R[7] + 16384
KBUF = R[7]
HALOV = R[7] + 7 * 2560
VBUF = R[5]
PHI0, PHI1 = R[7], R[0]
KVOP = R[5]
OP_KVB, OP_ZA, OP_ZB, OP_ZERO = 5120, 6400, 6656, 6720
EX = {0: (R[3], R[6]), 1: (R[2], R[4]), 2: (R[1], R[6])}

LOG2E = 1.4426950408889634
SCALE = 20 ** -0.5

SX, SW, SWS, SDBG, SAUX, SWO, SOUT = 8, 12, 16, 20, 24, 44, 96
sWAVE, sRB, sHG, sBR = 28, 29, 30, 31
sXO, sWO, sWL, sNONCE = 32, 37, 42, 43
sT0, sT1, sT2, sT3, sT4 = 3, 4, 5, 6, 7
sL2E = 48
sM, sM2 = 50, 52
sGE, sLE = 54, 60
sPOLL, sEX, sSAVE = 66, 67, 68
sTS = 70
sWX, sXD = 92, 93
sCLK = 94
sPT, sPL = 100, 101

vLANE, vTR, vWD, vXO = 0, 1, 4, 7
vTMP = 8
vACC = 24
vAC1 = 44
vX = 64
vK = 144
vWA, vWB, vPHI = 156, 172, 184
vV, vQ = 154, 164
FRB = [204, 208, 212, 216, 220, 224, 228, 232]
vXT = 236
vMISC = 240
D = 7
vXO2, vXR = vTMP, vTMP + 1


def f2u(x):
    return struct.unpack('<I', struct.pack('<f', x))[0]


def vr(b, n=4):
    return 'v[%d:%d]' % (b, b + n - 1)


def sr(b, n=2):
    return 's[%d:%d]' % (b, b + n - 1)


MF = 'v_mfma_f32_16x16x32_bf16'


class VM:
    def __init__(self):
        self.ops = []

    def add(self, tag, n=1):
        self.ops += [tag] * n

    def mark(self, tag):
        self.ops.append('#' + tag)

    def count(self, *tags):
        last = -1
        for i, t in enumerate(self.ops):
            if t in tags or (t[0] == '#' and t[1:] in tags):
                last = i
        assert last >= 0, tags
        return len([t for t in self.ops[last + 1:] if t[0] != '#'])

    def wait(self, a, *tags):
        a('s_waitcnt vmcnt(%d)' % min(self.count(*tags), 63))


class Pipe:
    def __init__(self, g, a):
        self.g, self.a = g, a
        self.pend = []
        self.nr = 0
        self.q = []

    def extra(self, tag, n):
        self.q += [tag] * n

    def drained(self):
        self.q = []

    def need(self, tag):
        if tag in self.q:
            last = len(self.q) - 1 - self.q[::-1].index(tag)
            k = min(len(self.q) - 1 - last, 15)
            self.a('s_waitcnt lgkmcnt(%d)' % k)
            self.q = self.q[len(self.q) - k:] if k else []

    def read(self, f):
        if len(self.pend) == D + 1:
            self.mfma()
        fb = FRB[self.nr % (D + 1)]
        self.g.tr_read(self.a, fb, f[0])
        self.g.tr_read(self.a, fb + 2, f[1])
        self.q += [self.nr, self.nr]
        self.pend.append((fb, f, self.nr))
        self.nr += 1

    def mfma(self):
        fb, (a0, a1, bop, bop1, ct, first), n = self.pend.pop(0)
        self.need(n)
        for acc, b in ((vACC + 4 * ct, bop), (vAC1 + 4 * ct, bop1)):
            self.a('%s %s, %s, %s, %s' % (MF, vr(acc), vr(fb), vr(b), '0' if first else vr(acc)))
        if self.pend and self.pend[0][2] in self.q:
            self.need(self.pend[min(1, len(self.pend) - 1)][2])

    def run(self, frags, pre, post, start=0, nxt=()):
        allf = list(frags) + list(nxt)[:D]
        for i in range(start, len(allf)):
            for e in pre.get(i, ()):
                e()
            self.read(allf[i])
            while len(self.pend) > D:
                self.mfma()
            for e in post.get(i, ()):
                e()
        keep = len(allf) - len(frags)
        while len(self.pend) > keep:
            self.mfma()
        return keep


class Rec:
    def __init__(self):
        self.lines = []

    def __call__(self, t):
        self.lines += t.split('\n')


class Gen:
    def __init__(self, stamps=False, opt=None):
        self.stamps = stamps
        self.nlab = 0
        self.opt = opt or {}

    def lab(self, p='L'):
        self.nlab += 1
        return '%s_%d' % (p, self.nlab)

    def stamp(self, a, i):
        if self.stamps and i in self.stamps:
            a('s_memrealtime %s' % sr(sTS + 2 * self.stamps.index(i)))

    def stamp_out(self, a):
        L = self.lab('Lst')
        a('s_waitcnt lgkmcnt(0)')
        a('s_cmp_lg_u32 s%d, %d' % (sWAVE, self.opt.get('stwave', 0)))
        a('s_cbranch_scc1 %s' % L)
        a('s_lshl_b32 s%d, s2, 6' % sT0)
        a('s_add_u32 s%d, s%d, %d' % (sT0, sT0, WS_DBG))
        a('v_mov_b32 v%d, 0' % vTMP)
        a('s_mov_b64 exec, 1')
        for i in range(len(self.stamps)):
            a('v_mov_b32 v%d, s%d' % (vTMP + 1, sTS + 2 * i))
            a('buffer_store_dword v%d, v%d, %s, s%d offen offset:%d' % (vTMP + 1, vTMP, sr(SWS, 4), sT0, 4 * i))
        a('s_mov_b64 exec, -1')
        a.label(L)

    def srd(self, a, d, src, nbytes):
        a('s_mov_b32 s%d, s%d' % (d, src))
        a('s_mov_b32 s%d, s%d' % (d + 1, src + 1))
        a('s_mov_b32 s%d, %d' % (d + 2, nbytes))
        a('s_mov_b32 s%d, 0x20000' % (d + 3))

    def mask(self, a, s, val):
        a('s_mov_b32 s%d, 0x%x' % (s, val & 0xffffffff))
        a('s_mov_b32 s%d, 0x%x' % (s + 1, (val >> 32) & 0xffffffff))

    def div10(self, a, vq, vrow, vc):
        a('v_mul_u32_u24 v%d, 6554, v%d' % (vrow, vq))
        a('v_lshrrev_b32 v%d, 16, v%d' % (vrow, vrow))
        a('v_mul_u32_u24 v%d, 10, v%d' % (vc, vrow))
        a('v_sub_u32 v%d, v%d, v%d' % (vc, vq, vc))

    def tr_read(self, a, dst, ldsaddr):
        b = ldsaddr // 61440
        off = ldsaddr - b * 61440
        assert off < 65536 and b < 3
        a('ds_read_b64_tr_b16 %s, v%d offset:%d' % (vr(dst, 2), vTR + b, off))

    def item(self, a, vm, it):
        kind, s, i = it
        if kind == 'S':
            part = (1280, 2560, 0)[s // 5]
            self.dma1(a, SW, sWO + s % 5, part, R[SREG[s]], i)
            vm.add('S%d' % s)
        elif kind == 'T':
            self.dma1(a, SWO, sWO, s * 64 * 1280, R[self.tmap[s]], i)
            vm.add('T%d' % s)
        elif kind == 'X':
            a('s_add_u32 m0, s%d, %d' % (sWX, XAREA[s] + 1024 * i))
            ss = sXO + s
            if i >= 2:
                a('s_add_u32 s%d, s%d, s%d' % (sT4, sXO + s, sXD))
                ss = sT4
            a('buffer_load_dwordx4 v%d, %s, s%d offen%s lds' % (vXO2 if i & 1 else vXO, sr(SX, 4), ss, self.opt.get('xflag', '')))
            vm.add('X%d' % s)
        elif kind == 'F':
            a('s_and_b32 s%d, s%d, 3' % (sT1, sWAVE))
            a('s_lshl_b32 s%d, s%d, 10' % (sT1, sT1))
            a('s_mul_i32 s%d, s%d, 3200' % (sT0, sHG))
            a('s_add_u32 s%d, s%d, s%d' % (sT0, sT0, sT1))
            a('s_add_u32 m0, s%d, %d' % (sT1, (WPHI, WPHI2)[s]))
            a('v_lshlrev_b32 v%d, 4, v%d' % (vXT + 2, vLANE))
            a('buffer_load_dwordx4 v%d, %s, s%d offen lds' % (vXT + 2, sr(SAUX, 4), sT0))
            vm.add('WPHI%d' % s)
        elif kind == 'O':
            self.wo_offsets(a)
        elif kind == 'P':
            T = vXT
            mix = self.opt.get('mix', 1)
            nl = 25 if mix else 13
            a('s_mul_i32 s%d, s%d, %d' % (sT4, sWAVE, nl))
            a('v_add_u32 v%d, s%d, v%d' % (T, sT4, vLANE))
            a('v_mul_u32_u24 v%d, 13108, v%d' % (T + 1, T))
            a('v_lshrrev_b32 v%d, 16, v%d' % (T + 1, T + 1))
            a('v_mul_u32_u24 v%d, %d, v%d' % (T + 2, 1280 - 5 * 128, T + 1))
            a('v_lshl_add_u32 v%d, v%d, 7, v%d' % (T + 2, T, T + 2))
            a('v_cmp_gt_u32 vcc, %d, v%d' % (nl, vLANE))
            a('v_mov_b32 v%d, 0x7ffffff0' % (T + 1))
            a('v_cndmask_b32 v%d, v%d, v%d, vcc' % (T + 2, T + 1, T + 2))
            a('s_bfe_u32 s%d, s2, 0x%x' % (sT4, {0: 0x50003, 1: 0x40004, 2: 0x40003}[mix]))
            a('s_mul_i32 s%d, s%d, %d' % (sT4, sT4, (40 if mix else 20) * 1280))
            a('s_lshr_b32 s%d, s%d, 2' % (sT3, sHG))
            a('s_mul_i32 s%d, s%d, 640' % (sT3, sT3))
            a('s_add_u32 s%d, s%d, s%d' % (sT4, sT4, sT3))
            a('buffer_load_dword v%d, v%d, %s, s%d offen' % (vXO, T + 2, sr(SWO, 4), sT4))
            vm.add('P')

    def dma1(self, a, srd, sbase, add, ldsbase, i):
        a('s_add_u32 m0, s%d, %d' % (sWL, ldsbase + 1024 * i))
        ss = sbase
        if add:
            a('s_add_u32 s%d, s%d, %d' % (sT4, sbase, add))
            ss = sT4
        if i == 2:
            a('s_mov_b32 exec_hi, 0')
        a('buffer_load_dwordx4 v%d, %s, s%d offen%s lds' % (vWD + i, sr(srd, 4), ss, self.opt.get('wflag', '')))
        if i == 2:
            a('s_mov_b32 exec_hi, -1')

    def group(self, kind, s):
        return [(kind, s, i) for i in range(4 if kind == 'X' else 3)]

    def xread(self, a, vm, pipe, u, wait=True):
        if wait:
            vm.wait(a, 'X%d' % u)
        for t in range(2):
            for mt in range(2):
                a('ds_read_b128 %s, v%d offset:%d' % (vr(vX + 16 * u + 8 * t + 4 * mt), vXR + t, XAREA[u] - R[4] + 2048 * mt))
        pipe.extra('XR%d' % u, 4)

    def pass_frags(self, p):
        fr = []
        for u in range(5):
            base = R[SREG[5 * p + u]]
            for t in range(2):
                for ct in range(5):
                    a0 = base + t * 5120 + ct * 32
                    fr.append((a0, a0 + 2560, vX + 16 * u + 8 * t, vX + 16 * u + 8 * t + 4, ct, u == 0 and t == 0))
        return fr

    def ready(self, a, vm, s, extra):
        def f():
            tags = ['S%d' % s] + (['X0'] if s == 0 else []) + extra.get(('wait', s), [])
            for e in extra.get(('pre', s), ()):
                e()
            self.stamp(a, 'w%d' % s)
            vm.wait(a, *tags)
            self.stamp(a, 'x%d' % s)
            a('s_barrier')
            self.stamp(a, 'b%d' % s)
            for e in extra.get(('post', s), ()):
                e()
        return f

    def gemm_pass(self, a, vm, pipe, p, sched, extra, start, prenext):
        pre, post = {}, {}
        for u in range(5):
            if not (u == 0 and start):
                pre.setdefault(10 * u, []).append(self.ready(a, vm, 5 * p + u, extra))
        for slot, es in sched.items():
            assert slot >= start
            for e in es:
                post.setdefault(slot, []).append((lambda e=e: self.item(a, vm, e)) if isinstance(e, tuple) else e)
        nxt = ()
        if prenext:
            pre.setdefault(50, []).append(self.ready(a, vm, 5 * p + 5, extra))
            nxt = self.pass_frags(p + 1)
        return pipe.run(self.pass_frags(p), pre, post, start, nxt)

    @staticmethod
    def put(sched, slots, items):
        for s, it in zip(slots, items):
            sched.setdefault(s, []).append(it)

    def spread(self, a, sched, lines, lo, hi):
        n = hi - lo
        glued = []
        for x in lines:
            if glued and glued[-1].split('\n')[-1].startswith('s_cmp'):
                glued[-1] += '\n' + x
            else:
                glued.append(x)
        lines = glued
        for c in range(n):
            part = lines[c * len(lines) // n:(c + 1) * len(lines) // n]
            sched.setdefault(lo + c, []).append(lambda part=part: [a(x) for x in part])

    def exch_write(self, a, regs):
        r0, r1 = regs
        a('s_and_b32 s%d, s%d, 3' % (sT0, sWAVE))
        a('s_mul_i32 s%d, s%d, 5120' % (sT0, sT0))
        a('s_mul_i32 s%d, s%d, %d' % (sT1, sEX, r1 - r0))
        a('s_add_u32 s%d, s%d, %d' % (sT0, sT0, r0))
        a('s_add_u32 s%d, s%d, s%d' % (sT2, sT0, sT1))
        a('s_add_u32 s%d, s%d, %d' % (sT0, sT0, r1 - r0))
        a('s_sub_u32 s%d, s%d, s%d' % (sT0, sT0, sT1))
        a('v_lshl_add_u32 v%d, v%d, 4, s%d' % (vXT + 3, vLANE, sT2))
        a('v_lshl_add_u32 v%d, v%d, 4, s%d' % (vXT + 2, vLANE, sT0))
        for ct in range(5):
            a('ds_write_b128 v%d, %s offset:%d' % (vXT + 3, vr(vAC1 + 4 * ct), 1024 * ct))

    def exch_read(self, a):
        for ct in range(5):
            a('ds_read_b128 %s, v%d offset:%d' % (vr(vAC1 + 4 * ct), vXT + 2, 1024 * ct))

    def exch_add_pack(self, a, dst, younger=0):
        for ct in range(5):
            a('s_waitcnt lgkmcnt(%d)' % (4 - ct + younger))
            for i in (0, 2):
                a('v_pk_add_f32 %s, %s, %s' % (vr(vACC + 4 * ct + i, 2), vr(vACC + 4 * ct + i, 2), vr(vAC1 + 4 * ct + i, 2)))
            a('v_cvt_pk_bf16_f32 v%d, v%d, v%d' % (dst + 2 * ct, vACC + 4 * ct, vACC + 4 * ct + 1))
            a('v_cvt_pk_bf16_f32 v%d, v%d, v%d' % (dst + 2 * ct + 1, vACC + 4 * ct + 2, vACC + 4 * ct + 3))

    def exchange(self, a, pipe, regs, dst, mid=None, early=None):
        self.exch_write(a, regs)
        if early:
            early()
        a('s_waitcnt lgkmcnt(0)')
        pipe.drained()
        if mid:
            self.stamp(a, 'q0')
        a('s_barrier')
        if mid:
            self.stamp(a, 'q1')
        self.exch_read(a)
        if mid:
            mid()
            self.stamp(a, 'q2')
        self.exch_add_pack(a, dst)

    def reduce4(self, a, *sets):
        for op, m, z in sets:
            a('v_permlane32_swap_b32 v%d, v%d' % (m[0], m[2]))
            a('v_permlane32_swap_b32 v%d, v%d' % (m[1], m[3]))
        for op, m, z in sets:
            a('%s v%d, v%d, v%d' % (op, m[0], m[0], m[2]))
            a('%s v%d, v%d, v%d' % (op, m[1], m[1], m[3]))
        for op, m, z in sets:
            a('v_permlane16_swap_b32 v%d, v%d' % (m[0], m[1]))
        for op, m, z in sets:
            a('%s v%d, v%d, v%d' % (op, z, m[0], m[1]))

    def bcast4(self, a, *zo):
        for z, o in zo:
            a('v_mov_b32 v%d, v%d' % (o[0], z))
            a('v_mov_b32 v%d, v%d' % (o[1], z))
        for z, o in zo:
            a('v_permlane16_swap_b32 v%d, v%d' % (o[0], o[1]))
        for z, o in zo:
            a('v_mov_b32 v%d, v%d' % (o[2], o[0]))
            a('v_mov_b32 v%d, v%d' % (o[3], o[1]))
        for z, o in zo:
            a('v_permlane32_swap_b32 v%d, v%d' % (o[0], o[2]))
            a('v_permlane32_swap_b32 v%d, v%d' % (o[1], o[3]))

    def poll(self, a, vaddr, vdat, lanes_mask, soff):
        L, Ld = self.lab('Lpoll'), self.lab('Lpd')
        self.mask(a, sSAVE, lanes_mask)
        a('s_mov_b64 exec, %s' % sr(sSAVE))
        a('s_mov_b32 s%d, 0' % sPOLL)
        a.label(L)
        a('buffer_load_dword v%d, v%d, %s, %s offen sc1' % (vdat, vaddr, sr(SWS, 4), soff))
        a('s_waitcnt vmcnt(0)')
        a('v_cmp_ne_u32 vcc, s%d, v%d' % (sNONCE, vdat))
        a('s_cbranch_vccz %s' % Ld)
        a('s_add_u32 s%d, s%d, 1' % (sPOLL, sPOLL))
        a('s_cmp_lt_u32 s%d, 0x40000' % sPOLL)
        a('s_sleep 1')
        a('s_cbranch_scc1 %s' % L)
        a.label(Ld)
        a('s_mov_b64 exec, -1')

    def set_flag(self, a, sidx, t=vTMP + 14):
        L = self.lab('Lfl')
        a('s_cmp_lg_u32 s%d, 0' % sWAVE)
        a('s_cbranch_scc1 %s' % L)
        a('v_mov_b32 v%d, 0' % t)
        a('v_mov_b32 v%d, s%d' % (t + 1, sNONCE))
        a('s_mov_b64 exec, 1')
        a('buffer_store_dword v%d, v%d, %s, s%d offen sc1' % (t + 1, t, sr(SWS, 4), sidx))
        a('s_mov_b64 exec, -1')
        a.label(L)

    def nonce_read(self, a, vm):
        a('v_mov_b32 v%d, 0' % vK)
        a('s_mov_b64 exec, 1')
        a('buffer_load_dword v%d, v%d, %s, 0 offen sc1' % (vK + 1, vK, sr(SDBG, 4)))
        a('s_mov_b64 exec, -1')
        vm.add('NONCE')

    def nonce_get(self, a, vm):
        L, Ld = self.lab('Lng'), self.lab('Lngd')
        vm.wait(a, 'NONCE')
        a('s_mov_b32 s%d, 0' % sPOLL)
        a.label(L)
        a('v_readfirstlane_b32 s%d, v%d' % (sNONCE, vK + 1))
        a('s_cmp_lg_u32 s%d, 0' % sNONCE)
        a('s_cbranch_scc1 %s' % Ld)
        a('s_mov_b64 exec, 1')
        a('buffer_load_dword v%d, v%d, %s, 0 offen sc1' % (vK + 1, vK, sr(SDBG, 4)))
        a('s_mov_b64 exec, -1')
        a('s_waitcnt vmcnt(0)')
        a('s_add_u32 s%d, s%d, 1' % (sPOLL, sPOLL))
        a('s_cmp_lt_u32 s%d, 0x40000' % sPOLL)
        a('s_cbranch_scc1 %s' % L)
        a.label(Ld)

    def wo_offsets(self, a):
        T = vTMP
        for i in range(3):
            a('v_add_u32 v%d, %d, v%d' % (T, 64 * i, vLANE))
            self.div10(a, T, T + 1, T + 2)
            a('v_mul_u32_u24 v%d, 1280, v%d' % (T + 1, T + 1))
            a('v_lshl_add_u32 v%d, v%d, 4, v%d' % (vWD + i, T + 2, T + 1))
        a('s_mul_i32 s%d, s%d, %d' % (sWO, sEX, 320 * 1280))
        a('s_and_b32 s%d, s%d, 3' % (sT4, sWAVE))
        a('s_mul_i32 s%d, s%d, %d' % (sT4, sT4, 16 * 1280))
        a('s_add_u32 s%d, s%d, s%d' % (sWO, sWO, sT4))
        a('s_mul_i32 s%d, s%d, 160' % (sT4, sHG))
        a('s_add_u32 s%d, s%d, s%d' % (sWO, sWO, sT4))

    def kernel(self):
        a = Asm()
        a('s_cmp_ge_u32 s2, 256')
        a('s_cbranch_scc1 L_END')
        a('s_load_dwordx16 s[44:59], s[0:1], 0')
        a('s_load_dwordx4 s[60:63], s[0:1], 64')
        a('s_memrealtime %s' % sr(sCLK))
        self.stamp(a, 'start')
        if self.opt.get('mix', 1) == 2:
            a('s_bitcmp1_b32 s2, 7')
        else:
            a('s_bitcmp0_b32 s2, %d' % (3 if self.opt.get('mix', 1) else 2))
        a('s_cbranch_scc1 L_A')
        for br in (1, 0):
            if br == 0:
                a.label('L_A')
            vm = VM()
            self.prologue(a, vm, br)
            if br:
                self.branch_b(a, vm)
            else:
                self.branch_a(a, vm)
            if br:
                a('s_endpgm')
        a.label('L_END')
        a('s_endpgm')
        return a.finish()

    def prologue(self, a, vm, br):
        a('s_mov_b32 s%d, %d' % (sBR, br))
        if self.opt.get('mix', 1):
            a('s_and_b32 s%d, s2, 3' % sRB)
            a('s_lshl_b32 s%d, s%d, 2' % (sRB, sRB))
            a('s_bfe_u32 s%d, s2, 0x%x' % (sT2, 0x20003 if self.opt.get('mix', 1) == 2 else 0x20004))
            a('s_add_u32 s%d, s%d, s%d' % (sRB, sRB, sT2))
            a('s_and_b32 s%d, s2, 4' % sHG)
            a('s_bfe_u32 s%d, s2, 0x%x' % (sT3, 0x20005 if self.opt.get('mix', 1) == 2 else 0x20006))
            a('s_add_u32 s%d, s%d, s%d' % (sHG, sHG, sT3))
        else:
            a('s_lshr_b32 s%d, s2, 3' % sT1)
            a('s_and_b32 s%d, s2, 1' % sRB)
            a('s_lshl_b32 s%d, s%d, 3' % (sRB, sRB))
            a('s_and_b32 s%d, s%d, 7' % (sT2, sT1))
            a('s_add_u32 s%d, s%d, s%d' % (sRB, sRB, sT2))
            a('s_bfe_u32 s%d, s2, 0x10001' % sHG)
            a('s_lshl_b32 s%d, s%d, 2' % (sHG, sHG))
            a('s_lshr_b32 s%d, s%d, 3' % (sT3, sT1))
            a('s_add_u32 s%d, s%d, s%d' % (sHG, sHG, sT3))
        a('v_lshrrev_b32 v%d, 6, v0' % vTMP)
        a('v_readfirstlane_b32 s%d, v%d' % (sWAVE, vTMP))
        a('v_and_b32 v%d, 63, v0' % vLANE)
        if self.opt.get('mix', 1):
            a('s_add_u32 s%d, s%d, s%d' % (sT2, sT2, sT3))
            a('s_and_b32 s%d, s2, 3' % sT3)
            a('s_add_u32 s%d, s%d, s%d' % (sT2, sT2, sT3))
            if self.opt.get('rot2', 2):
                a('s_bfe_u32 s%d, s2, 0x10002' % sT3)
                a('s_mul_i32 s%d, s%d, %d' % (sT3, sT3, self.opt.get('rot2', 2)))
                a('s_add_u32 s%d, s%d, s%d' % (sT2, sT2, sT3))
                a('s_cmp_ge_u32 s%d, 10' % sT2)
                a('s_cselect_b32 s%d, 10, 0' % sT3)
                a('s_sub_u32 s%d, s%d, s%d' % (sT2, sT2, sT3))
        else:
            a('s_mul_i32 s%d, s%d, 10' % (sT2, sT2))
            a('s_mul_i32 s%d, s%d, 20' % (sT3, sT3))
            a('s_add_u32 s%d, s%d, s%d' % (sT2, sT2, sT3))
            a('s_lshr_b32 s%d, s%d, 4' % (sT2, sT2))
        a('s_cmp_ge_u32 s%d, 5' % sT2)
        a('s_cselect_b32 s%d, 5, 0' % sT3)
        a('s_sub_u32 s%d, s%d, s%d' % (sT2, sT2, sT3))
        rm = self.opt.get('rotmode', 1)
        if rm == 0:
            a('s_mov_b32 s%d, 0' % sT2)
        elif rm == 2:
            a('s_and_b32 s%d, s2, 3' % sT2)
        elif rm == 3:
            a('s_and_b32 s%d, s%d, 1' % (sT2, sT2))
            a('s_lshl_b32 s%d, s%d, 1' % (sT2, sT2))
        a('s_lshr_b32 s%d, s%d, 2' % (sEX, sWAVE))
        a('s_and_b32 s%d, s%d, 3' % (sT1, sWAVE))
        a('s_lshl_b32 s%d, s%d, 1' % (sPT, sT1))
        a('s_add_u32 s%d, s%d, s%d' % (sPT, sPT, sEX))
        a('s_mul_i32 s%d, s%d, 2560' % (sPL, sPT))
        a('s_lshl_b32 s%d, s%d, 3' % (sT0, sRB))
        a('s_add_u32 s%d, s%d, s%d' % (sT0, sT0, sPT))
        a('s_mul_i32 s%d, s%d, 20480' % (sT0, sT0))
        a('s_lshl_b32 s%d, s%d, 7' % (sT1, sEX))
        a('s_add_u32 s%d, s%d, s%d' % (sT0, sT0, sT1))
        a('s_mul_i32 s%d, s%d, -40960' % (sXD, sEX))
        a('s_add_u32 s%d, s%d, 20480' % (sXD, sXD))
        a('s_mul_i32 s%d, s%d, 160' % (sT1, sHG))
        for u in range(5):
            a('s_lshl_b32 s%d, s%d, 8' % (sXO + u, sT2))
            a('s_add_u32 s%d, s%d, s%d' % (sXO + u, sXO + u, sT0))
            a('s_mul_i32 s%d, s%d, %d' % (sWO + u, sT2, 128 * 3840))
            a('s_add_u32 s%d, s%d, s%d' % (sWO + u, sWO + u, sT1))
            if u < 4:
                a('s_add_u32 s%d, s%d, 1' % (sT2, sT2))
                a('s_cmp_ge_u32 s%d, 5' % sT2)
                a('s_cselect_b32 s%d, 0, s%d' % (sT2, sT2))
        a('s_mul_i32 s%d, s%d, 2560' % (sWL, sWAVE))
        a('s_lshl_b32 s%d, s%d, 12' % (sWX, sWAVE))
        T = vTMP + 4
        a('v_lshrrev_b32 v%d, 3, v%d' % (T, vLANE))
        a('v_lshrrev_b32 v%d, 4, v%d' % (T + 1, vLANE))
        a('v_and_b32 v%d, 7, v%d' % (T + 2, vLANE))
        a('v_xor_b32 v%d, v%d, v%d' % (T + 1, T + 1, T + 2))
        a('v_mul_u32_u24 v%d, 1280, v%d' % (T, T))
        a('v_lshl_add_u32 v%d, v%d, 4, v%d' % (vXO, T + 1, T))
        a('v_xor_b32 v%d, 64, v%d' % (vXO2, vXO))
        a('v_add_u32 v%d, 10240, v%d' % (vXO2, vXO2))
        a('s_lshr_b32 s%d, s%d, 1' % (sT0, sWAVE))
        a('s_lshl_b32 s%d, s%d, 3' % (sT0, sT0))
        a('s_and_b32 s%d, s%d, 1' % (sT1, sWAVE))
        a('s_add_u32 s%d, s%d, s%d' % (sT0, sT0, sT1))
        a('s_mul_i32 s%d, s%d, %d' % (sT0, sT0, 4 * 3840))
        for i in range(3):
            a('v_add_u32 v%d, %d, v%d' % (T, 64 * i, vLANE))
            self.div10(a, T, T + 1, T + 2)
            a('v_and_b32 v%d, 12, v%d' % (T + 3, T + 1))
            a('v_add_u32 v%d, v%d, v%d' % (T + 1, T + 1, T + 3))
            a('v_mul_u32_u24 v%d, 3840, v%d' % (T + 1, T + 1))
            a('v_lshlrev_b32 v%d, 4, v%d' % (T + 2, T + 2))
            a('v_add3_u32 v%d, v%d, v%d, s%d' % (vWD + i, T + 1, T + 2, sT0))
        self.stamp(a, 'k0')
        a('s_waitcnt lgkmcnt(0)')
        self.stamp(a, 'ka')
        self.srd(a, SX, 50 if br else 44, 2621440)
        self.srd(a, SW, 52 if br else 46, 2457600)
        for it in self.group('S', 0) + self.group('X', 0):
            self.item(a, vm, it)
        self.stamp(a, 'i0')
        self.srd(a, SDBG, 60, 256)
        self.srd(a, SWS, 62, WS_BYTES)
        if br:
            self.srd(a, SAUX, 54, 25600)
        self.srd(a, SWO, 56 if br else 48, 819200)
        self.srd(a, SOUT, 58, 5242880)
        if br == (1 if self.opt.get('mix', 1) == 2 else 0):
            Ln = self.lab('Lnonce')
            a('s_or_b32 s%d, s2, s%d' % (sT0, sWAVE))
            a('s_cmp_lg_u32 s%d, 0' % sT0)
            a('s_cbranch_scc1 %s' % Ln)
            a('s_or_b32 s%d, s%d, 1' % (sNONCE, sCLK))
            a('v_mov_b32 v%d, s%d' % (vK, sNONCE))
            a('v_mov_b32 v%d, 0' % (vK + 1))
            a('s_mov_b64 exec, 1')
            a('buffer_store_dword v%d, v%d, %s, 0 offen sc1' % (vK, vK + 1, sr(SDBG, 4)))
            a('s_mov_b64 exec, -1')
            a.label(Ln)
        if self.opt.get('pretouch'):
            Lp = self.lab('Lpt')
            a('s_cmp_lg_u32 s%d, 5' % sWAVE)
            a('s_cbranch_scc1 %s' % Lp)
            a('v_lshlrev_b32 v%d, 20, v%d' % (vK + 4, vLANE))
            a('s_mov_b64 exec, 0x3ff')
            a('buffer_load_dword v%d, v%d, %s, 0 offen' % (vK + 5, vK + 4, sr(SWS, 4)))
            a('buffer_load_dword v%d, v%d, %s, 0 offen' % (vK + 6, vK + 4, sr(SOUT, 4)))
            a('buffer_load_dword v%d, v%d, %s, 0 offen' % (vK + 7, vK + 4, sr(SWO, 4)))
            a('s_mov_b64 exec, -1')
            a.label(Lp)
        a('v_and_b32 v%d, 15, v%d' % (T, vLANE))
        a('v_lshrrev_b32 v%d, 1, v%d' % (T + 1, T))
        a('v_lshrrev_b32 v%d, 4, v%d' % (T + 2, vLANE))
        a('v_xor_b32 v%d, v%d, v%d' % (T + 1, T + 1, T + 2))
        a('v_lshlrev_b32 v%d, 7, v%d' % (T, T))
        a('v_lshl_add_u32 v%d, v%d, 4, v%d' % (T, T + 1, T))
        a('s_add_u32 s%d, s%d, %d' % (sT0, sWX, R[4]))
        a('v_add_u32 v%d, s%d, v%d' % (vXR, sT0, T))
        a('v_xor_b32 v%d, 64, v%d' % (vXR + 1, vXR))
        a('v_lshrrev_b32 v%d, 2, v%d' % (T, vLANE))
        a('v_mul_u32_u24 v%d, 160, v%d' % (T, T))
        a('v_and_b32 v%d, 3, v%d' % (T + 1, vLANE))
        a('v_lshl_add_u32 v%d, v%d, 3, v%d' % (vTR, T + 1, T))
        for h in (1, 2, 3):
            self.mask(a, sGE + 2 * (h - 1), (~0 << (16 * h)))
        for h in (0, 1, 2):
            self.mask(a, sLE + 2 * h, (1 << (16 * (h + 1))) - 1)
        a('s_mov_b32 s%d, 0x%x' % (sL2E, f2u(LOG2E)))
        a('s_mov_b32 s%d, 0x%x' % (sL2E + 1, f2u(LOG2E)))

    def second_group(self, a, vm):
        self.stamp(a, 'j0')
        a('s_barrier')
        self.stamp(a, 'j1')
        for it in self.group('S', 1) + self.group('X', 1):
            self.item(a, vm, it)
        self.stamp(a, 'i1')

    def tr_fix(self, a):
        a('s_mul_i32 s%d, s%d, 10240' % (sT0, sEX))
        a('v_add_u32 v%d, s%d, v%d' % (vTR, sT0, vTR))
        a('v_add_u32 v%d, 61440, v%d' % (vTR + 1, vTR))
        a('v_add_u32 v%d, 122880, v%d' % (vTR + 2, vTR))

    def sched0(self, a, vm, pipe, extra, br):
        g = self.group
        s = {}
        need = lambda t: (lambda: pipe.need(t))
        xr = lambda u: (lambda: self.xread(a, vm, pipe, u))
        extra.setdefault(('post', 0), []).append(lambda: self.xread(a, vm, pipe, 0, wait=False))
        self.put(s, (0, 1, 2), g('S', 2))
        self.put(s, (3, 3, 4, 5, 6), [need('XR0')] + g('X', 2))
        self.put(s, (6,), [xr(1)])
        self.put(s, (9, 9, 10, 11, 12), [need('XR1')] + g('X', 3))
        self.put(s, (13, 14, 15), g('S', 3))
        self.put(s, (16,), [xr(2)])
        if br:
            self.put(s, (17,), [('F', 0, 0)])
        self.put(s, (19, 19, 20, 21, 22), [need('XR2')] + g('X', 4))
        self.put(s, (23, 24, 25), g('S', 4))
        self.put(s, (26,), [xr(3)])
        self.put(s, (30, 32, 34), g('S', 5))
        self.put(s, (36,), [xr(4)])
        extra.setdefault(('pre', 4), []).append(need('XR4'))
        if self.opt.get('late78', 1):
            self.put(s, (40, 43, 46), g('S', 6))
        else:
            self.put(s, (40, 41, 42, 43, 44, 45, 46, 47, 48), g('S', 6) + g('S', 7) + g('S', 8))
        self.put(s, (28, 49), [lambda: self.nonce_read(a, vm), lambda: self.nonce_get(a, vm)])
        return s

    def sched1(self):
        g = self.group
        s = {}
        self.put(s, (10, 11, 13, 14, 16, 17, 19, 20, 22), g('S', 9) + g('S', 10) + g('S', 11))
        self.put(s, (24, 26, 28), g('S', 12))
        if self.opt.get('wopf', 1):
            self.put(s, (32,), [('P', 0, 0)])
        return s

    def sched2(self, nt):
        g = self.group
        s = {}
        self.put(s, (10, 11, 13, 14, 16, 17), g('S', 13) + g('S', 14))
        self.put(s, (19,), [('O', 0, 0)])
        for j, base in enumerate(nt):
            self.put(s, (base, base + 2, base + 4), g('T', j))
        return s

    def store_o(self, a, reg):
        a('s_lshl_b32 s%d, s%d, 4' % (sT0, sBR))
        a('s_add_u32 s%d, s%d, s%d' % (sT0, sT0, sRB))
        a('s_lshl_b32 s%d, s%d, 3' % (sT0, sT0))
        a('s_add_u32 s%d, s%d, s%d' % (sT0, sT0, sPT))
        a('s_lshl_b32 s%d, s%d, 3' % (sT0, sT0))
        a('s_add_u32 s%d, s%d, s%d' % (sT0, sT0, sHG))
        a('s_mul_i32 s%d, s%d, 2560' % (sT0, sT0))
        a('v_lshlrev_b32 v%d, 4, v%d' % (vTMP + 14, vLANE))
        a('v_lshlrev_b32 v%d, 3, v%d' % (vTMP + 15, vLANE))
        a('buffer_store_dwordx4 %s, v%d, %s, s%d offen sc1' % (vr(reg), vTMP + 14, sr(SWS, 4), sT0))
        a('buffer_store_dwordx4 %s, v%d, %s, s%d offen offset:1024 sc1' % (vr(reg + 4), vTMP + 14, sr(SWS, 4), sT0))
        a('buffer_store_dwordx2 %s, v%d, %s, s%d offen offset:2048 sc1' % (vr(reg + 8, 2), vTMP + 15, sr(SWS, 4), sT0))

    def v_to_lds(self, a, reg, vaddr, base):
        for ct in range(5):
            a('ds_write_b64 v%d, %s offset:%d' % (vaddr, vr(reg + 2 * ct, 2), base + 32 * ct))

    def select_pack(self, a, lo, hi, dst):
        for ct in range(5):
            parts = []
            if ct <= 3:
                parts.append((lo[ct], None if ct == 0 else sGE + 2 * (ct - 1)))
            if ct >= 1:
                parts.append((hi[ct - 1], None if ct == 4 else sLE + 2 * (ct - 1)))
            for acc, m in parts:
                if m is not None:
                    a('s_mov_b64 exec, %s' % sr(m))
                elif ct == 4:
                    a('s_mov_b64 exec, -1')
                a('v_cvt_pk_bf16_f32 v%d, v%d, v%d' % (dst + 2 * ct, acc, acc + 1))
                a('v_cvt_pk_bf16_f32 v%d, v%d, v%d' % (dst + 2 * ct + 1, acc + 2, acc + 3))

    def head_mask(self, a, dst, src):
        for h in range(4):
            for i in range(2):
                if h == 0:
                    a('v_mov_b32 v%d, v%d' % (dst + i, src + i))
                else:
                    a('v_cndmask_b32_e64 v%d, 0, v%d, %s' % (dst + 4 * h + i, src + 2 * h + i, sr(sGE + 2 * (h - 1))))
            for i in range(2):
                if h == 3:
                    a('v_mov_b32 v%d, v%d' % (dst + 14 + i, src + 8 + i))
                else:
                    a('v_cndmask_b32_e64 v%d, 0, v%d, %s' % (dst + 4 * h + 2 + i, src + 2 * h + 2 + i, sr(sLE + 2 * h)))

    def branch_a(self, a, vm):
        pipe = Pipe(self, a)
        self.tmap = {0: 0, 1: 3, 2: 2, 3: 4, 4: 6}
        vKW, vVW, vBC, vBP, vMC, vVP, vVC = vMISC, vMISC + 1, vMISC + 2, vMISC + 6, vMISC + 10, vMISC + 14, vMISC + 15
        vPOS, vG4 = vXT, vXT + 1
        T = vTMP + 4
        c = Rec()
        c('v_lshl_add_u32 v%d, v%d, 3, s%d' % (vKW, vLANE, sPL))
        c('v_add_u32 v%d, %d, v%d' % (vKW, KBUF, vKW))
        c('v_and_b32 v%d, 15, v%d' % (vPOS, vLANE))
        c('v_lshrrev_b32 v%d, 4, v%d' % (vG4, vLANE))
        c('v_mul_u32_u24 v%d, 160, v%d' % (vVW, vPOS))
        c('v_lshrrev_b32 v%d, 2, v%d' % (T, vPOS))
        c('v_xor_b32 v%d, v%d, v%d' % (T, T, vG4))
        c('v_lshl_add_u32 v%d, v%d, 3, v%d' % (vVW, T, vVW))
        c('v_lshlrev_b32 v%d, 3, v%d' % (T + 6, vG4))
        c('v_xor_b32 v%d, v%d, v%d' % (T + 6, T + 6, vTR))
        c('v_lshlrev_b32 v%d, 2, v%d' % (vG4, vG4))
        NEG = f2u(-1e30)
        c('v_mov_b32 v%d, 0x%x' % (T, NEG))
        for r in range(4):
            c('v_sub_u32 v%d, v%d, v%d' % (T + 1, vPOS, vG4))
            c('v_subrev_u32 v%d, %d, v%d' % (T + 1, r, T + 1))
            c('v_and_b32 v%d, 0x80000001, v%d' % (T + 2, T + 1))
            c('v_cmp_eq_u32 vcc, 0, v%d' % (T + 2))
            c('v_cndmask_b32_e64 v%d, v%d, 0, vcc' % (vBC + r, T))
            c('v_cmp_eq_u32 vcc, 0x80000000, v%d' % (T + 2))
            c('v_cndmask_b32_e64 v%d, v%d, 0, vcc' % (vBP + r, T))
        c('v_and_b32 v%d, 1, v%d' % (T + 1, vPOS))
        c('v_lshlrev_b32 v%d, 4, v%d' % (T + 2, T + 1))
        c('v_mov_b32 v%d, 0xffff' % (T + 3))
        c('v_lshlrev_b32 v%d, v%d, v%d' % (T + 3, T + 2, T + 3))
        for j in range(2):
            c('v_add_u32 v%d, %d, v%d' % (T + 2, 2 * j, vG4))
            c('v_cmp_le_u32 vcc, v%d, v%d' % (T + 2, vPOS))
            c('v_cndmask_b32_e64 v%d, 0, v%d, vcc' % (vMC + 2 + j, T + 3))
            c('v_cndmask_b32_e64 v%d, v%d, 0, vcc' % (vMC + j, T + 3))
        c('s_mul_i32 s%d, s%d, 10240' % (sT1, sEX))
        c('s_add_u32 s%d, s%d, %d' % (sT0, sPL, VBUF))
        c('s_sub_u32 s%d, s%d, s%d' % (sT0, sT0, sT1))
        c('v_add_u32 v%d, s%d, v%d' % (vVC, sT0, T + 6))
        c('s_sub_u32 s%d, s%d, 2560' % (sT0, sT0))
        c('s_cmp_eq_u32 s%d, 0' % sWAVE)
        c('s_cselect_b32 s%d, %d, s%d' % (sT0, HALOV, sT0))
        c('v_add_u32 v%d, s%d, v%d' % (vVP, sT0, T + 6))

        self.tr_fix(a)
        self.second_group(a, vm)

        def flag_halo():
            a('s_lshl_b32 s%d, s%d, 3' % (sT1, sRB))
            a('s_add_u32 s%d, s%d, s%d' % (sT1, sT1, sHG))
            a('s_lshl_b32 s%d, s%d, 7' % (sT1, sT1))
            a('s_add_u32 s%d, s%d, %d' % (sT1, sT1, WS_FLAG))
            self.set_flag(a, sT1)

        fs = self.opt.get('flagstage', 12)
        extra = {('wait', fs): ['HALO'], ('post', fs): [flag_halo]}
        s0 = self.sched0(a, vm, pipe, extra, 0)
        self.spread(a, s0, c.lines, 30, 40)
        st = self.gemm_pass(a, vm, pipe, 0, s0, extra, 0, True)
        self.stamp(a, 'p0')
        self.exchange(a, pipe, EX[0], vK, early=(lambda: [self.item(a, vm, it) for it in self.group('S', 7) + self.group('S', 8)]) if self.opt.get('late78', 1) else None)
        for ct in range(5):
            a('ds_write_b64 v%d, %s offset:%d' % (vKW, vr(vK + 2 * ct, 2), 512 * ct))
        st = self.gemm_pass(a, vm, pipe, 1, self.sched1(), extra, st, True)
        self.stamp(a, 'p1')
        self.exchange(a, pipe, EX[1], vV)
        a('s_add_u32 s%d, s%d, %d' % (sT0, sPL, VBUF))
        a('v_add_u32 v%d, s%d, v%d' % (vTMP, sT0, vVW))
        self.v_to_lds(a, vV, vTMP, 0)
        Lh = self.lab('Lhalo')
        a('s_cmp_lg_u32 s%d, 7' % sWAVE)
        a('s_cbranch_scc1 %s' % Lh)
        a('s_lshl_b32 s%d, s%d, 3' % (sT0, sRB))
        a('s_add_u32 s%d, s%d, s%d' % (sT0, sT0, sHG))
        a('s_mul_i32 s%d, s%d, 5120' % (sT0, sT0))
        a('s_add_u32 s%d, s%d, %d' % (sT0, sT0, WS_HALO))
        a('v_lshlrev_b32 v%d, 4, v%d' % (vTMP + 1, vLANE))
        for i in range(5):
            if i == 4:
                a('s_add_u32 s%d, s%d, 4096' % (sT0, sT0))
            a('buffer_store_dwordx4 %s, v%d, %s, s%d offen offset:%d sc1' % (
                vr(vK + 4 * i), vTMP + 1, sr(SWS, 4), sT0, (1024 * i) % 4096))
        a.label(Lh)
        vm.mark('HALO')
        def halo_slot():
            a('s_lshl_b32 s%d, s%d, 3' % (sT1, sRB))
            a('s_add_u32 s%d, s%d, s%d' % (sT1, sT1, sHG))
            a('s_sub_u32 s%d, s%d, 8' % (sT1, sT1))
            a('s_max_i32 s%d, s%d, 0' % (sT1, sT1))
            a('s_lshl_b32 s%d, s%d, 7' % (sT2, sT1))
            a('s_add_u32 s%d, s%d, %d' % (sT2, sT2, WS_FLAG))

        def probe():
            halo_slot()
            a('v_mov_b32 v%d, 0' % (vTMP + 2))
            a('s_mov_b64 exec, 1')
            a('buffer_load_dword v%d, v%d, %s, s%d offen sc1' % (vTMP + 3, vTMP + 2, sr(SWS, 4), sT2))
            a('s_mov_b64 exec, -1')
            vm.add('PROBE')

        def halo_loads():
            a('s_mul_i32 s%d, s%d, 5120' % (sT0, sT1))
            a('s_add_u32 s%d, s%d, %d' % (sT0, sT0, WS_HALO))
            a('v_lshlrev_b32 v%d, 4, v%d' % (vTMP + 1, vLANE))
            for i in range(5):
                if i == 4:
                    a('s_add_u32 s%d, s%d, 4096' % (sT0, sT0))
                a('buffer_load_dwordx4 %s, v%d, %s, s%d offen offset:%d sc1' % (
                    vr(vKP + 4 * i), vTMP + 1, sr(SWS, 4), sT0, (1024 * i) % 4096))

        vKP, vVO, vQM, vSP, vSC = vX, vX + 20, vX + 40, vX + 56, vACC
        s2 = self.sched2((21, 31))
        self.put(s2, (42,), [probe])
        st = self.gemm_pass(a, vm, pipe, 2, s2, extra, st, False)
        self.stamp(a, 'p2')
        Lw0, Lw1, Lz, Lz2, Lnp, Lgot = [self.lab(x) for x in ('Lw0', 'Lw1', 'Lz', 'Lz2', 'Lnp', 'Lgot')]
        self.exch_write(a, EX[2])
        a('s_mov_b32 s%d, 0' % sM)
        a('s_cmp_lg_u32 s%d, 0' % sWAVE)
        a('s_cbranch_scc1 %s' % Lnp)
        vm.wait(a, 'PROBE')
        a('v_readfirstlane_b32 s%d, v%d' % (sT0, vTMP + 3))
        a('s_cmp_lg_u32 s%d, s%d' % (sT0, sNONCE))
        a('s_cbranch_scc1 %s' % Lnp)
        halo_slot()
        halo_loads()
        a('s_mov_b32 s%d, 1' % sM)
        a.label(Lnp)
        vm.mark('HLD')
        a('s_waitcnt lgkmcnt(0)')
        a('s_barrier')
        self.exch_read(a)
        for j in (2, 3):
            for it in self.group('T', j):
                self.item(a, vm, it)
        self.exch_add_pack(a, vQ)
        a('s_barrier')
        for it in self.group('T', 4):
            self.item(a, vm, it)
        a('s_cmp_eq_u32 s%d, 0' % sWAVE)
        a('s_cbranch_scc1 %s' % Lw0)
        a('v_subrev_u32 v%d, 2560, v%d' % (vTMP, vKW))
        for ct in range(5):
            a('ds_read_b64 %s, v%d offset:%d' % (vr(vKP + 2 * ct, 2), vTMP, 512 * ct))
        a('s_branch %s' % Lw1)
        a.label(Lw0)
        a('s_cmp_eq_u32 s%d, 1' % sM)
        a('s_cbranch_scc1 %s' % Lgot)
        a('s_cmp_eq_u32 s%d, 0' % sRB)
        a('s_cbranch_scc1 %s' % Lz)
        halo_slot()
        a('v_mov_b32 v%d, 0' % vTMP)
        self.poll(a, vTMP, vTMP + 1, 1, 's%d' % sT2)
        halo_loads()
        a('s_waitcnt vmcnt(0)')
        a.label(Lgot)
        vm.wait(a, 'HLD')
        a('s_cmp_lg_u32 s%d, 0' % sRB)
        a('s_cbranch_scc1 %s' % Lz2)
        a.label(Lz)
        for i in range(20):
            a('v_mov_b32 v%d, 0' % (vKP + i))
        for r in range(4):
            a('v_mov_b32 v%d, 0x%x' % (vBP + r, NEG))
        a.label(Lz2)
        a('v_add_u32 v%d, %d, v%d' % (vTMP, HALOV, vVW))
        self.v_to_lds(a, vKP + 10, vTMP, 0)
        a('s_waitcnt lgkmcnt(0)')
        a.label(Lw1)
        for ct in range(5):
            a('ds_read_b64_tr_b16 %s, v%d offset:%d' % (vr(vVO + 4 * ct, 2), vVP, 32 * ct))
            a('ds_read_b64_tr_b16 %s, v%d offset:%d' % (vr(vVO + 4 * ct + 2, 2), vVC, 32 * ct))
        self.head_mask(a, vQM, vQ)
        for h in range(4):
            a('%s %s, %s, %s, %s' % (MF, vr(vSC + 4 * h), vr(vK + 2 * h), vr(vQM + 4 * h), vr(vBC)))
        a('s_waitcnt lgkmcnt(10)')
        for h in range(4):
            a('%s %s, %s, %s, %s' % (MF, vr(vSP + 4 * h), vr(vKP + 2 * h), vr(vQM + 4 * h), vr(vBP)))
        vE, vMX, vZ, vO4 = vTMP, vTMP + 8, vTMP + 12, FRB[0]
        r4 = lambda b: [b + h for h in range(4)]
        for h in range(4):
            for j in range(2):
                a('v_max3_f32 v%d, v%d, v%d, v%d' % (vE + 2 * h + j, vSC + 4 * h + 2 * j, vSC + 4 * h + 2 * j + 1, vSP + 4 * h + 2 * j))
        for h in range(4):
            for j in range(2):
                a('v_max_f32 v%d, v%d, v%d' % (vE + 2 * h + j, vE + 2 * h + j, vSP + 4 * h + 2 * j + 1))
        for h in range(4):
            a('v_max_f32 v%d, v%d, v%d' % (vMX + h, vE + 2 * h, vE + 2 * h + 1))
        self.reduce4(a, ('v_max_f32', r4(vMX), vZ))
        a('s_mov_b32 s%d, 0x%x' % (sT0, f2u(SCALE * LOG2E)))
        a('v_mul_f32 v%d, s%d, v%d' % (vZ, sT0, vZ))
        self.bcast4(a, (vZ, r4(vO4)))
        for h in range(4):
            for j in range(2):
                a('v_fma_f32 v%d, v%d, s%d, -v%d' % (vE + 2 * h + j, vE + 2 * h + j, sT0, vO4 + h))
        for i in range(8):
            a('v_exp_f32 v%d, v%d' % (vE + i, vE + i))
        for h in range(4):
            a('v_add_f32 v%d, v%d, v%d' % (vMX + h, vE + 2 * h, vE + 2 * h + 1))
        self.reduce4(a, ('v_add_f32', r4(vMX), vZ))
        a('v_rcp_f32 v%d, v%d' % (vZ, vZ))
        self.bcast4(a, (vZ, r4(vO4)))
        for h in range(4):
            for j in range(2):
                a('v_mul_f32 v%d, v%d, v%d' % (vE + 2 * h + j, vE + 2 * h + j, vO4 + h))
        for i in range(8):
            a('v_cvt_pk_bf16_f32 v%d, v%d, v%d' % (vE + i, vE + i, vE + i))
        vP = vQM
        for h in range(4):
            for j in range(2):
                a('v_and_b32 v%d, v%d, v%d' % (vP + 4 * h + j, vMC + j, vE + 2 * h + j))
                a('v_and_b32 v%d, v%d, v%d' % (vP + 4 * h + 2 + j, vMC + 2 + j, vE + 2 * h + j))
        a('s_waitcnt lgkmcnt(0)')
        lo = [vSC + 4 * h for h in range(4)]
        hi = [vSP + 4 * h for h in range(4)]
        for h in range(4):
            a('%s %s, %s, %s, 0' % (MF, vr(lo[h]), vr(vVO + 4 * h), vr(vP + 4 * h)))
            a('%s %s, %s, %s, 0' % (MF, vr(hi[h]), vr(vVO + 4 * h + 4), vr(vP + 4 * h)))
        self.select_pack(a, lo, hi, vQ)
        self.store_o(a, vQ)
        self.phase3(a, (R[1], R[5]))

    def features_mfma(self, a, src, DA):
        for h in range(4):
            a('%s %s, %s, %s, 0' % (MF, vr(DA + 4 * h), vr(vWA + 4 * h), vr(src + 2 * h)))
        for i in range(3):
            a('%s %s, %s, %s, %s' % (MF, vr(DA + 16), vr(vWB + 4 * i), vr(src + 4 * i), '0' if i == 0 else vr(DA + 16)))

    def features_valu(self, a, DA, EP, BN, SC, pk=False):
        EN = vPHI
        MX, MN, ZX, ZN = vTMP, vTMP + 5, vTMP + 10, vTMP + 11
        BX = vTMP + 12
        r4 = lambda b: [b + h for h in range(4)]
        for h in range(5):
            a('v_max3_f32 v%d, v%d, v%d, v%d' % (MX + h, DA + 4 * h, DA + 4 * h + 1, DA + 4 * h + 2))
            a('v_min3_f32 v%d, v%d, v%d, v%d' % (MN + h, DA + 4 * h, DA + 4 * h + 1, DA + 4 * h + 2))
        for h in range(5):
            a('v_max_f32 v%d, v%d, v%d' % (MX + h, MX + h, DA + 4 * h + 3))
            a('v_min_f32 v%d, v%d, v%d' % (MN + h, MN + h, DA + 4 * h + 3))
        self.reduce4(a, ('v_max_f32', r4(MX), ZX), ('v_min_f32', r4(MN), ZN))
        a('v_max_f32 v%d, v%d, v%d' % (ZX, ZX, MX + 4))
        a('v_min_f32 v%d, v%d, v%d' % (ZN, ZN, MN + 4))
        a('v_mul_f32 v%d, s%d, v%d' % (ZX, sL2E, ZX))
        a('v_mul_f32 v%d, s%d, v%d' % (ZN, sL2E, ZN))
        self.bcast4(a, (ZX, r4(BX)), (ZN, r4(BN)))
        for h in (4, 0, 1, 2, 3):
            mx = BX + h if h < 4 else ZX
            mn = BN + h if h < 4 else ZN
            if pk:
                for r in (0, 2):
                    a('v_pk_fma_f32 %s, %s, %s, %s op_sel:[0,0,%d] op_sel_hi:[1,1,%d] neg_lo:[0,0,1] neg_hi:[0,0,1]' % (
                        vr(EP + 4 * h + r, 2), vr(DA + 4 * h + r, 2), sr(sL2E), vr(mx & ~1, 2), mx & 1, mx & 1))
                    a('v_pk_fma_f32 %s, %s, %s, %s op_sel:[0,0,%d] op_sel_hi:[1,1,%d] neg_lo:[1,0,0] neg_hi:[1,0,0]' % (
                        vr(EN + 4 * h + r, 2), vr(DA + 4 * h + r, 2), sr(sL2E), vr(mn & ~1, 2), mn & 1, mn & 1))
                continue
            for r in range(4):
                a('v_fma_f32 v%d, v%d, s%d, -v%d' % (EP + 4 * h + r, DA + 4 * h + r, sL2E, mx))
                a('v_fma_f32 v%d, -v%d, s%d, v%d' % (EN + 4 * h + r, DA + 4 * h + r, sL2E, mn))
        for i in range(20):
            a('v_exp_f32 v%d, v%d' % (EP + i, EP + i))
            a('v_exp_f32 v%d, v%d' % (EN + i, EN + i))
        for base, S in ((EP, MX), (EN, MN)):
            for h in range(5):
                a('v_pk_add_f32 %s, %s, %s' % (vr(SC[h], 2), vr(base + 4 * h, 2), vr(base + 4 * h + 2, 2)))
            for h in range(5):
                a('v_add_f32 v%d, v%d, v%d' % (S + h, SC[h], SC[h] + 1))
        self.reduce4(a, ('v_add_f32', r4(MX), ZX), ('v_add_f32', r4(MN), ZN))
        a('v_add_f32 v%d, v%d, v%d' % (ZX, ZX, MX + 4))
        a('v_add_f32 v%d, v%d, v%d' % (ZN, ZN, MN + 4))
        a('v_rcp_f32 v%d, v%d' % (ZX, ZX))
        a('v_rcp_f32 v%d, v%d' % (ZN, ZN))
        self.bcast4(a, (ZX, r4(BX)), (ZN, r4(BN)))
        for h in (4, 0, 1, 2, 3):
            sx = BX + h if h < 4 else ZX
            sn = BN + h if h < 4 else ZN
            if pk:
                for r in (0, 2):
                    for E, m in ((EP, sx), (EN, sn)):
                        a('v_pk_mul_f32 %s, %s, %s op_sel:[0,%d] op_sel_hi:[1,%d]' % (
                            vr(E + 4 * h + r, 2), vr(E + 4 * h + r, 2), vr(m & ~1, 2), m & 1, m & 1))
                continue
            for r in range(4):
                a('v_mul_f32 v%d, v%d, v%d' % (EP + 4 * h + r, EP + 4 * h + r, sx))
                a('v_mul_f32 v%d, v%d, v%d' % (EN + 4 * h + r, EN + 4 * h + r, sn))
        for h in range(5):
            a('v_cvt_pk_bf16_f32 v%d, v%d, v%d' % (vPHI + 4 * h + 3, EN + 4 * h + 2, EN + 4 * h + 3))
            a('v_cvt_pk_bf16_f32 v%d, v%d, v%d' % (vPHI + 4 * h + 2, EN + 4 * h, EN + 4 * h + 1))
            a('v_cvt_pk_bf16_f32 v%d, v%d, v%d' % (vPHI + 4 * h, EP + 4 * h, EP + 4 * h + 1))
            a('v_cvt_pk_bf16_f32 v%d, v%d, v%d' % (vPHI + 4 * h + 1, EP + 4 * h + 2, EP + 4 * h + 3))

    def features(self, a, src, inter=None):
        self.features_mfma(a, src, vACC)
        rec = Rec()
        self.features_valu(rec, vACC, vAC1, src, [vACC + 2 * i for i in range(5)], pk=self.opt.get('pkq', 1))
        n = len(rec.lines)
        k = 0
        for i, line in enumerate(rec.lines):
            if inter:
                while k < len(inter) and k * n <= i * len(inter) * 1.15:
                    inter[k]()
                    k += 1
            a(line)
        if inter:
            while k < len(inter):
                inter[k]()
                k += 1

    def branch_b(self, a, vm):
        pipe = Pipe(self, a)
        self.tmap = {0: 0, 1: 7, 2: 3, 3: 2, 4: 4}
        vVW, vPB, vRA, vRB, vRV, vSO = vMISC, vMISC + 1, vMISC + 2, vMISC + 3, vMISC + 4, vMISC + 5
        vGA, vGL = vMISC + 12, vMISC + 14
        vPOS, vG = vXT, vXT + 1
        T = vTMP + 4
        self.tr_fix(a)
        self.second_group(a, vm)
        c = Rec()
        c('s_mul_i32 s%d, s%d, 10240' % (sT3, sEX))
        c('v_subrev_u32 v%d, s%d, v%d' % (T + 7, sT3, vTR))
        c('v_and_b32 v%d, 15, v%d' % (vPOS, vLANE))
        c('v_lshrrev_b32 v%d, 4, v%d' % (vG, vLANE))
        c('v_mul_u32_u24 v%d, 160, v%d' % (vVW, vPOS))
        c('v_add_u32 v%d, s%d, v%d' % (vVW, sPL, vVW))
        c('v_and_b32 v%d, 1, v%d' % (T, vG))
        c('v_mul_u32_u24 v%d, 80, v%d' % (T, T))
        c('v_add3_u32 v%d, v%d, v%d, 64' % (vPB, vVW, T))
        c('v_mov_b32 v%d, %d' % (T, PHI0))
        c('v_mov_b32 v%d, %d' % (T + 1, PHI1))
        c('v_cndmask_b32_e64 v%d, v%d, v%d, %s' % (T, T, T + 1, sr(sGE + 2)))
        c('v_add_u32 v%d, v%d, v%d' % (vPB, vPB, T))
        c('v_lshrrev_b32 v%d, 2, v%d' % (T, vPOS))
        c('v_xor_b32 v%d, v%d, v%d' % (T, T, vG))
        c('v_lshl_add_u32 v%d, v%d, 3, v%d' % (vVW, T, vVW))
        c('v_lshlrev_b32 v%d, 3, v%d' % (T, vG))
        c('v_xor_b32 v%d, v%d, v%d' % (T + 7, T + 7, T))
        sH, sSG = sT2, sEX
        c('s_and_b32 s%d, s%d, 3' % (sH, sWAVE))
        c('s_mov_b32 s%d, %d' % (sT0, PHI0))
        c('s_cmp_ge_u32 s%d, 2' % sH)
        c('s_cselect_b32 s%d, %d, s%d' % (sT0, PHI1, sT0))
        c('s_and_b32 s%d, s%d, 1' % (sT1, sH))
        c('s_mul_i32 s%d, s%d, 80' % (sT1, sT1))
        c('s_add_u32 s%d, s%d, s%d' % (sT0, sT0, sT1))
        c('s_lshl_b32 s%d, s%d, 5' % (sT1, sSG))
        c('s_add_u32 s%d, s%d, s%d' % (sT0, sT0, sT1))
        c('v_add_u32 v%d, s%d, v%d' % (vRA, sT0, T + 7))
        c('v_lshrrev_b32 v%d, 2, v%d' % (vRB, vLANE))
        c('v_mul_u32_u24 v%d, 160, v%d' % (vRB, vRB))
        c('v_and_b32 v%d, 1, v%d' % (T, vLANE))
        c('v_mul_u32_u24 v%d, 80, v%d' % (T, T))
        c('v_add_u32 v%d, v%d, v%d' % (vRB, vRB, T))
        c('v_and_b32 v%d, 2, v%d' % (T, vLANE))
        c('v_cmp_eq_u32 vcc, 0, v%d' % T)
        c('v_mov_b32 v%d, %d' % (T + 2, PHI0))
        c('v_cndmask_b32 v%d, v%d, v%d, vcc' % (T, T + 1, T + 2))
        c('s_lshl_b32 s%d, s%d, 3' % (sT1, sSG))
        c('s_add_u32 s%d, s%d, 64' % (sT1, sT1))
        c('v_add3_u32 v%d, v%d, v%d, s%d' % (vRB, vRB, T, sT1))
        c('s_lshl_b32 s%d, s%d, 5' % (sT1, sH))
        c('s_add_u32 s%d, s%d, %d' % (sT1, sT1, VBUF))
        c('v_add_u32 v%d, s%d, v%d' % (vRV, sT1, T + 7))
        self.b_addr(c, vPOS, vG, vSO, vGA, vGL)

        def wphi_read(base):
            UA, UB, A = vPHI, vPHI + 10, vK + 2
            a('v_lshrrev_b32 v%d, 2, v%d' % (A, vLANE))
            a('v_mul_u32_u24 v%d, 40, v%d' % (A, A))
            a('v_add_u32 v%d, %d, v%d' % (A, base, A))
            a('v_and_b32 v%d, 3, v%d' % (A + 1, vLANE))
            a('v_lshl_add_u32 v%d, v%d, 3, v%d' % (A + 1, A + 1, A))
            for ct in range(5):
                a('ds_read_b64_tr_b16 %s, v%d offset:%d' % (vr(UA + 2 * ct, 2), A + 1, 640 * ct))
                a('ds_read_b64_tr_b16 %s, v%d offset:%d' % (vr(UB + 2 * ct, 2), A, 640 * ct + 32))
            pipe.extra('WP', 10)

        def wphi_mask():
            UA, UB = vPHI, vPHI + 10
            pipe.need('WP')
            self.head_mask(a, vWA, UA)
            for ct in range(5):
                m = 0
                for l in range(64):
                    g, i = l >> 4, l & 15
                    if (i >> 2) == (ct if g >= ct else ct - 1):
                        m |= 1 << l
                self.mask(a, sM, m)
                for i in range(2):
                    a('v_cndmask_b32_e64 v%d, 0, v%d, %s' % (vWB + 2 * ct + i, UB + 2 * ct + i, sr(sM)))
            a('v_mov_b32 v%d, 0' % (vWB + 10))
            a('v_mov_b32 v%d, 0' % (vWB + 11))
            a('v_mov_b32 v%d, 0' % (vK + 10))
            a('v_mov_b32 v%d, 0' % (vK + 11))

        def flag_kv():
            a('s_lshl_b32 s%d, s%d, 4' % (sT1, sHG))
            a('s_add_u32 s%d, s%d, s%d' % (sT1, sT1, sRB))
            a('s_lshl_b32 s%d, s%d, 7' % (sT1, sT1))
            a('s_add_u32 s%d, s%d, %d' % (sT1, sT1, WS_FLAG + 128 * 128))
            self.set_flag(a, sT1)

        def zero_store():
            L = self.lab('Lzs')
            a('s_cmp_lg_u32 s%d, 1' % sWAVE)
            a('s_cbranch_scc1 %s' % L)
            a('s_mul_i32 s%d, s%d, 840' % (sT0, sRB))
            a('s_and_b32 s%d, s%d, -16' % (sT0, sT0))
            a('s_mul_i32 s%d, s%d, %d' % (sT1, sHG, KVP_REC))
            a('s_add_u32 s%d, s%d, s%d' % (sT0, sT0, sT1))
            a('s_add_u32 s%d, s%d, %d' % (sT0, sT0, WS_KVP))
            for i in range(4):
                a('v_mov_b32 v%d, 0' % (vK + 4 + i))
            a('v_lshlrev_b32 v%d, 4, v%d' % (vK + 8, vLANE))
            a('s_mov_b32 exec_hi, 0x3fffff')
            a('buffer_store_dwordx4 %s, v%d, %s, s%d offen sc1' % (vr(vK + 4), vK + 8, sr(SWS, 4), sT0))
            a('s_mov_b32 exec_hi, -1')
            a.label(L)
            vm.mark('ZST')

        def flag_zero():
            a('s_lshl_b32 s%d, s%d, 4' % (sT1, sHG))
            a('s_add_u32 s%d, s%d, s%d' % (sT1, sT1, sRB))
            a('s_lshl_b32 s%d, s%d, 7' % (sT1, sT1))
            a('s_add_u32 s%d, s%d, %d' % (sT1, sT1, WS_FLAG + 512 * 128))
            self.set_flag(a, sT1, vXT)

        def probe(base, tag):
            def f():
                a('s_lshl_b32 s%d, s%d, 11' % (sT4, sHG))
                a('s_add_u32 s%d, s%d, %d' % (sT4, sT4, base))
                a('v_and_b32 v%d, 15, v%d' % (vXT, vLANE))
                a('v_lshlrev_b32 v%d, 7, v%d' % (vXT, vXT))
                a('buffer_load_dword v%d, v%d, %s, s%d offen sc1' % (vXO, vXT, sr(SWS, 4), sT4))
                vm.add(tag)
            return f

        def poll16(base):
            a('s_lshl_b32 s%d, s%d, 11' % (sT3, sHG))
            a('s_add_u32 s%d, s%d, %d' % (sT3, sT3, base))
            a('v_lshlrev_b32 v%d, 7, v%d' % (vXT, vLANE))
            self.poll(a, vXT, vXT + 1, 0xffff, 's%d' % sT3)

        fs = self.opt.get('flagstage', 13)
        extra = {('wait', 3): ['WPHI0'], ('post', 3): [lambda: wphi_read(WPHI)], ('wait', fs): ['KVST'], ('post', fs): [flag_kv],
                 ('wait', 5): ['ZST'], ('post', 5): [flag_zero]}
        extra.setdefault(('wait', 13), []).append('WPHI1')
        extra.setdefault(('post', 13), []).append(lambda: wphi_read(WPHI2))
        s0 = self.sched0(a, vm, pipe, extra, 1)
        self.put(s0, (8, 35), [zero_store, wphi_mask])
        self.spread(a, s0, c.lines, 36, 49)
        st = self.gemm_pass(a, vm, pipe, 0, s0, extra, 0, True)
        self.stamp(a, 'p0')
        self.exchange(a, pipe, EX[0], vK, early=(lambda: [self.item(a, vm, it) for it in self.group('S', 7) + self.group('S', 8)]) if self.opt.get('late78', 1) else None)
        self.features_mfma(a, vK, vPHI)
        fk = Rec()
        self.features_valu(fk, vPHI, vWA, vK, [vK + 4, vK + 6, vK + 8, vWA + 20, vWA + 22], pk=self.opt.get('pkk', 1))
        s1 = self.sched1()
        self.spread(a, s1, fk.lines, 8, self.opt.get('fkend', 48))
        self.put(s1, (40,), [probe(WS_FLAG + 512 * 128, 'ZPROBE')])
        self.stamp(a, 'fk')
        st = self.gemm_pass(a, vm, pipe, 1, s1, extra, st, True)
        self.stamp(a, 'p1')
        self.exch_write(a, EX[1])
        a('v_add_u32 v%d, %d, v%d' % (vTMP, PHI0, vVW))
        a('v_add_u32 v%d, %d, v%d' % (vTMP + 2, VBUF, vVW))
        for h in range(4):
            if h == 2:
                a('s_waitcnt lgkmcnt(0)')
                self.stamp(a, 'e0')
                a('s_barrier')
                self.stamp(a, 'e1')
                self.exch_read(a)
            o = (h & 1) * 10
            a('ds_write2_b64 v%d, %s, %s offset0:%d offset1:%d' % (
                vVW if h >> 1 else vTMP, vr(vPHI + 4 * h, 2), vr(vPHI + 4 * h + 2, 2), o, o + 4))
        assert PHI1 == 0
        a('ds_write_b128 v%d, %s' % (vPB, vr(vPHI + 16)))
        self.exch_add_pack(a, vK, younger=3)
        self.v_to_lds(a, vK, vTMP + 2, 0)
        ONE = vAC1 + 4
        for i in range(4):
            a('v_mov_b32 v%d, 0x3f803f80' % (ONE + i))
        a('s_waitcnt lgkmcnt(0)')
        pipe.drained()
        self.stamp(a, 'e2')
        a('s_barrier')
        self.stamp(a, 'e3')
        KA = [vACC + 4 * i for i in range(6)]
        BUF = [vTMP, vPHI]
        self._kv_reads(a, BUF[0], 0, vRA, vRB, vRV)
        self._kv_reads(a, BUF[1], 5120, vRA, vRB, vRV)
        late = self.group('S', 13) + self.group('S', 14) + [None, None]
        for ks in range(4):
            B = BUF[ks % 2]
            a('s_waitcnt lgkmcnt(%d)' % (8 if ks < 3 else 0))
            c = lambda i: '0' if ks == 0 else vr(KA[i])
            for i, (x, y) in enumerate(((B, B + 8), (B, B + 12), (B, ONE), (B + 4, B + 8), (B + 4, B + 12), (B + 4, ONE))):
                a('%s %s, %s, %s, %s' % (MF, vr(KA[i]), vr(x), vr(y), c(i)))
            if ks + 2 < 4:
                self._kv_reads(a, B, (ks + 2) * 5120, vRA, vRB, vRV)
            for it in late[2 * ks:2 * ks + 2]:
                if it:
                    self.item(a, vm, it)
        self.stamp(a, 'e4')
        Lz = self.lab('Lzok')
        vm.wait(a, 'ZPROBE')
        a('v_cmp_ne_u32 vcc, s%d, v%d' % (sNONCE, vXO))
        a('s_cbranch_vccz %s' % Lz)
        poll16(WS_FLAG + 512 * 128)
        a.label(Lz)
        a('s_mul_i32 s%d, s%d, %d' % (sT0, sHG, KVP_REC))
        a('s_add_u32 s%d, s%d, %d' % (sT0, sT0, WS_KVP))
        a('v_cmp_ne_u32 %s, 0, v%d' % (sr(sM), vSO + 6))
        for m in (KA[0], KA[1]):
            a('v_permlane32_swap_b32 v%d, v%d' % (m, m + 2))
            a('v_permlane32_swap_b32 v%d, v%d' % (m + 1, m + 3))
        for r in range(4):
            a('v_cndmask_b32_e64 v%d, 0, v%d, %s' % (KA[3] + r, KA[3] + r, sr(sM)))
        for m in (KA[0], KA[1]):
            a('v_permlane16_swap_b32 v%d, v%d' % (m, m + 1))
            a('v_permlane16_swap_b32 v%d, v%d' % (m + 2, m + 3))
        for r in range(4):
            a('v_cndmask_b32_e64 v%d, 0, v%d, %s' % (KA[4] + r, KA[4] + r, sr(sGE + 4)))
        self.stamp(a, 'e5')
        for t in range(2):
            for i in range(4):
                a('buffer_atomic_add_f32 v%d, v%d, %s, s%d offen offset:%d' % (KA[t] + i, vSO + t, sr(SWS, 4), sT0, 256 * i))
        self.reduce4(a, ('v_add_f32', [KA[3] + r for r in range(4)], KA[3]), ('v_add_f32', [KA[4] + r for r in range(4)], KA[4]))
        for r in (1, 2, 3):
            self.mask(a, sM, 0x1111111111111111 << r)
            for z in (KA[2], KA[5]):
                a('v_cndmask_b32_e64 v%d, v%d, v%d, %s' % (z, z, z + r, sr(sM)))
        for t in range(2, 6):
            a('buffer_atomic_add_f32 v%d, v%d, %s, s%d offen' % (KA[t], vSO + t, sr(SWS, 4), sT0))
        vm.add('KVST', 12)
        self.stamp(a, 'kv')
        s2 = {}
        self.put(s2, (12,), [('O', 0, 0)])
        for j, base in enumerate((21, 26, 32)):
            self.put(s2, (base, base + 2, base + 4), self.group('T', j))
        self.put(s2, (20, 36, 45), [('F', 1, 0), wphi_mask, probe(WS_FLAG + 128 * 128, 'PROBE')])
        st = self.gemm_pass(a, vm, pipe, 2, s2, extra, st, False)
        self.stamp(a, 'p2')
        R0, R1 = vX, vX + 4

        def gather():
            a('s_mul_i32 s%d, s%d, %d' % (sT0, sHG, KVP_REC))
            a('s_add_u32 s%d, s%d, %d' % (sT0, sT0, WS_KVP))
            a('buffer_load_dwordx4 %s, v%d, %s, s%d offen sc1' % (vr(R0), vGA, sr(SWS, 4), sT0))
            a('buffer_load_dwordx4 %s, v%d, %s, s%d offen sc1' % (vr(R1), vGA + 1, sr(SWS, 4), sT0))

        Lno, Lj = self.lab('Lno'), self.lab('Lj')

        def mid():
            a('s_mov_b32 s%d, 0' % sM2)
            vm.wait(a, 'PROBE')
            a('v_cmp_ne_u32 vcc, s%d, v%d' % (sNONCE, vXO))
            a('s_cbranch_vccnz %s' % Lno)
            gather()
            a('s_mov_b32 s%d, 1' % sM2)
            a.label(Lno)
            for j in (3, 4):
                for it in self.group('T', j):
                    self.item(a, vm, it)

        self.exchange(a, pipe, EX[2], vK, mid)
        self.stamp(a, 'g0')
        self.features(a, vK)
        a('s_cmp_eq_u32 s%d, 1' % sM2)
        a('s_cbranch_scc1 %s' % Lj)
        poll16(WS_FLAG + 128 * 128)
        gather()
        a('s_waitcnt vmcnt(0)')
        a.label(Lj)
        self.stamp(a, 'fq')
        A = vTMP
        a('v_lshlrev_b32 v%d, 4, v%d' % (A, vLANE))
        a('v_add_u32 v%d, %d, v%d' % (A, KVOP, A))
        a('v_lshrrev_b32 v%d, 4, v%d' % (A + 1, vLANE))
        a('v_lshlrev_b32 v%d, 4, v%d' % (A + 1, A + 1))
        a('v_add_u32 v%d, %d, v%d' % (A + 1, KVOP, A + 1))
        a('v_and_b32 v%d, 15, v%d' % (A + 2, vLANE))
        a('v_lshlrev_b32 v%d, 4, v%d' % (A + 2, A + 2))
        a('v_mov_b32 v%d, %d' % (A + 4, KVOP + OP_ZERO))
        for ct in range(5):
            m = 0
            for l in range(64):
                if (16 * ct + (l & 15)) // 20 == (l >> 4):
                    m |= 1 << l
            self.mask(a, sM, m)
            a('v_add_u32 v%d, %d, v%d' % (A + 3, KVOP + OP_KVB + 256 * ct, A + 2))
            a('v_cndmask_b32_e64 v%d, v%d, v%d, %s' % (A + 5 + ct, A + 4, A + 3, sr(sM)))
        for h in range(4):
            self.mask(a, sM, 0xffff << (16 * h))
            a('v_mov_b32 v%d, %d' % (A + 3, KVOP + OP_ZB + 16 * h))
            a('v_cndmask_b32_e64 v%d, v%d, v%d, %s' % (A + 10 + h, A + 4, A + 3, sr(sM)))
        a('s_waitcnt vmcnt(6)')
        for i, RR in enumerate((R0, R1)):
            a('v_cvt_pk_bf16_f32 v%d, v%d, v%d' % (RR, RR, RR + 1))
            a('v_cvt_pk_bf16_f32 v%d, v%d, v%d' % (RR + 1, RR + 2, RR + 3))
            a('ds_write_b64 v%d, %s' % (vGL + i, vr(RR, 2)))
        a('s_waitcnt lgkmcnt(0)')
        a('s_barrier')
        self.stamp(a, 'g1')
        KVA, KVB, ZA, ZB = vX, vX + 20, vX + 40, vX + 56
        for ct in range(5):
            a('ds_read_b128 %s, v%d' % (vr(KVB + 4 * ct), A + 5 + ct))
        for h in range(4):
            a('ds_read_b128 %s, v%d offset:%d' % (vr(ZA + 4 * h), A + 1, OP_ZA + 64 * h))
        for h in range(4):
            a('ds_read_b128 %s, v%d' % (vr(ZB + 4 * h), A + 10 + h))
        for ct in range(5):
            a('ds_read_b128 %s, v%d offset:%d' % (vr(KVA + 4 * ct), A, 1024 * ct))
        NB, DEN = FRB[0], vWA
        lo = [vACC + 4 * h for h in range(4)]
        hi = [vACC + 16 + 4 * h for h in range(4)]
        a('s_waitcnt lgkmcnt(13)')
        for ct in range(5):
            a('%s %s, %s, %s, 0' % (MF, vr(NB + 4 * ct), vr(KVB + 4 * ct), vr(vPHI + 16)))
        a('s_waitcnt lgkmcnt(9)')
        for h in range(4):
            a('%s %s, %s, %s, 0' % (MF, vr(DEN + 4 * h), vr(ZA + 4 * h), vr(vPHI + 4 * h)))
        a('s_waitcnt lgkmcnt(5)')
        for h in range(4):
            a('%s %s, %s, %s, %s' % (MF, vr(DEN + 4 * h), vr(ZB + 4 * h), vr(vPHI + 16), vr(DEN + 4 * h)))
        a('s_waitcnt lgkmcnt(0)')
        for h in range(4):
            a('%s %s, %s, %s, %s' % (MF, vr(lo[h]), vr(KVA + 4 * h), vr(vPHI + 4 * h), vr(NB + 4 * h)))
            a('%s %s, %s, %s, %s' % (MF, vr(hi[h]), vr(KVA + 4 * h + 4), vr(vPHI + 4 * h), vr(NB + 4 * h + 4)))
        for h in range(4):
            a('v_add_f32 v%d, 0x%x, v%d' % (vTMP + h, f2u(1e-6), DEN + 4 * h))
        for h in range(4):
            a('v_rcp_f32 v%d, v%d' % (vTMP + h, vTMP + h))
        for h in range(4):
            for acc in (lo[h], hi[h]):
                for r in (0, 2):
                    a('v_pk_mul_f32 %s, %s, %s op_sel:[0,%d] op_sel_hi:[1,%d]' % (
                        vr(acc + r, 2), vr(acc + r, 2), vr(vTMP + (h & ~1), 2), h & 1, h & 1))
        self.select_pack(a, lo, hi, vK)
        self.store_o(a, vK)
        self.phase3(a, (R[1], R[6]))

    def b_addr(self, a, vPOS, vG, vSO, vGA, vGL):
        T = vTMP + 4
        sH, sSG = sT2, sEX
        BAD = 0x7ffffff0
        a('v_mov_b32 v%d, 0x%x' % (T + 4, BAD))
        a('v_lshlrev_b32 v%d, 2, v%d' % (T + 5, vG))
        a('v_lshl_add_u32 v%d, v%d, 4, v%d' % (T + 5, vPOS, T + 5))
        a('s_lshl_b32 s%d, s%d, 2' % (sT0, sH))
        a('s_mul_i32 s%d, s%d, 5' % (sT1, sSG))
        a('s_add_u32 s%d, s%d, s%d' % (sT1, sT1, sH))
        a('s_lshl_b32 s%d, s%d, 10' % (sT1, sT1))
        a('v_add_u32 v%d, s%d, v%d' % (T, sT1, T + 5))
        a('v_cmp_le_u32 %s, s%d, v%d' % (sr(sM), sT0, vPOS))
        a('v_cndmask_b32_e64 v%d, v%d, v%d, %s' % (vSO, T + 4, T, sr(sM)))
        a('v_add_u32 v%d, 1024, v%d' % (T, T))
        a('s_add_u32 s%d, s%d, 4' % (sT0, sT0))
        a('v_cmp_gt_u32 vcc, s%d, v%d' % (sT0, vPOS))
        a('v_cndmask_b32 v%d, v%d, v%d, vcc' % (vSO + 1, T + 4, T))
        a('v_lshlrev_b32 v%d, 2, v%d' % (T + 6, vPOS))
        a('v_lshl_add_u32 v%d, v%d, 4, v%d' % (T + 6, vG, T + 6))
        a('s_lshl_b32 s%d, s%d, 6' % (sT1, sWAVE))
        a('s_add_u32 s%d, s%d, %d' % (sT1, sT1, REC_ZA))
        a('v_add_u32 v%d, s%d, v%d' % (T, sT1, T + 6))
        a('v_cmp_gt_u32 vcc, 4, v%d' % vPOS)
        a('v_cndmask_b32 v%d, v%d, v%d, vcc' % (vSO + 2, T + 4, T))
        a('v_mov_b32 v%d, s%d' % (T + 1, sH))
        a('v_subrev_u32 v%d, 1, v%d' % (T + 2, T + 1))
        a('v_cndmask_b32_e64 v%d, v%d, v%d, %s' % (T + 1, T + 2, T + 1, sr(sM)))
        a('v_cmp_eq_u32 vcc, v%d, v%d' % (T + 1, vG))
        a('v_cndmask_b32_e64 v%d, 0, -1, vcc' % (vSO + 6))
        a('s_mul_i32 s%d, s%d, 1280' % (sT1, sSG))
        a('s_lshl_b32 s%d, s%d, 8' % (sT0, sH))
        a('s_add_u32 s%d, s%d, s%d' % (sT1, sT1, sT0))
        a('s_add_u32 s%d, s%d, %d' % (sT1, sT1, REC_KVB))
        a('v_add_u32 v%d, s%d, v%d' % (vSO + 3, sT1, T + 5))
        a('s_mov_b32 s%d, 0x70000000' % sT0)
        a('s_cmp_eq_u32 s%d, 3' % sH)
        a('s_cselect_b32 s%d, 256, s%d' % (sT0, sT0))
        a('v_add_u32 v%d, s%d, v%d' % (vSO + 4, sT0, vSO + 3))
        a('s_lshl_b32 s%d, s%d, 6' % (sT1, sSG))
        a('s_add_u32 s%d, s%d, %d' % (sT1, sT1, REC_ZB))
        a('v_add_u32 v%d, s%d, v%d' % (T, sT1, T + 6))
        a('s_cmp_eq_u32 s%d, 0' % sH)
        a('s_cselect_b32 s%d, 4, 0' % sT0)
        a('v_cmp_gt_u32 vcc, s%d, v%d' % (sT0, vPOS))
        a('v_cndmask_b32 v%d, v%d, v%d, vcc' % (vSO + 5, T + 4, T))
        for i in range(2):
            U = T
            a('s_lshl_b32 s%d, s%d, 6' % (sT0, sWAVE))
            a('s_add_u32 s%d, s%d, %d' % (sT0, sT0, 512 * i))
            a('v_add_u32 v%d, s%d, v%d' % (U, sT0, vLANE))
            a('v_lshlrev_b32 v%d, 4, v%d' % (U + 1, U))
            a('v_cmp_gt_u32 vcc, 840, v%d' % U)
            a('v_cndmask_b32 v%d, v%d, v%d, vcc' % (vGA + i, T + 4, U + 1))
            a('v_mov_b32 v%d, 0' % (U + 2))
            a('v_mov_b32 v%d, 320' % (U + 3))
            a('v_mov_b32 v%d, %d' % (U + 5, KVOP))
            for st, cnt, lb in ((640, 80, OP_KVB), (800, 16, OP_ZA), (832, 4, OP_ZB)):
                if i == 0:
                    continue
                a('v_cmp_le_u32 vcc, %d, v%d' % (st, U))
                a('v_mov_b32 v%d, %d' % (U + 6, st))
                a('v_cndmask_b32 v%d, v%d, v%d, vcc' % (U + 2, U + 2, U + 6))
                a('v_mov_b32 v%d, %d' % (U + 6, cnt))
                a('v_cndmask_b32 v%d, v%d, v%d, vcc' % (U + 3, U + 3, U + 6))
                a('v_mov_b32 v%d, %d' % (U + 6, KVOP + lb))
                a('v_cndmask_b32 v%d, v%d, v%d, vcc' % (U + 5, U + 5, U + 6))
            a('v_sub_u32 v%d, v%d, v%d' % (U + 2, U, U + 2))
            a('v_cmp_ge_u32 vcc, v%d, v%d' % (U + 2, U + 3))
            a('v_sub_u32 v%d, v%d, v%d' % (U + 6, U + 2, U + 3))
            a('v_cndmask_b32 v%d, v%d, v%d, vcc' % (U + 2, U + 2, U + 6))
            a('v_lshl_add_u32 v%d, v%d, 4, v%d' % (U + 5, U + 2, U + 5))
            a('v_add_u32 v%d, 8, v%d' % (U + 6, U + 5))
            a('v_cndmask_b32 v%d, v%d, v%d, vcc' % (vGL + i, U + 5, U + 6))
            if i == 1:
                a('v_cmp_gt_u32 vcc, 840, v%d' % U)
                a('v_and_b32 v%d, 1, v%d' % (U + 5, U))
                a('v_lshlrev_b32 v%d, 3, v%d' % (U + 5, U + 5))
                a('v_add_u32 v%d, %d, v%d' % (U + 5, KVOP + OP_ZERO, U + 5))
                a('v_cndmask_b32 v%d, v%d, v%d, vcc' % (vGL + i, U + 5, vGL + i))

    def _kv_reads(self, a, B, o, vRA, vRB, vRV):
        for dst, v, off in ((B, vRA, 0), (B + 2, vRA, 2560), (B + 8, vRV, 0), (B + 10, vRV, 2560), (B + 12, vRV, 32),
                            (B + 14, vRV, 2592), (B + 4, vRB, 0), (B + 6, vRB, 2560)):
            a('ds_read_b64_tr_b16 %s, v%d offset:%d' % (vr(dst, 2), v, o + off))

    def phase3(self, a, exregs):
        vm = VM()
        pipe = Pipe(self, a)
        self.stamp(a, 'o')
        vOO = vMISC
        for i in range(3):
            a('v_add_u32 v%d, %d, v%d' % (vTMP, 64 * i, vLANE))
            self.div10(a, vTMP, vTMP + 1, vTMP + 2)
            a('v_mul_u32_u24 v%d, 2560, v%d' % (vTMP + 1, vTMP + 1))
            a('v_lshl_add_u32 v%d, v%d, 4, v%d' % (vOO + i, vTMP + 2, vTMP + 1))
        a('v_mov_b32 v%d, 0x7ffffff0' % vTMP)
        a('v_cmp_gt_u32 vcc, 32, v%d' % vLANE)
        a('v_cndmask_b32 v%d, v%d, v%d, vcc' % (vOO + 2, vTMP, vOO + 2))
        vA16, vA8, vB16, vB8 = vMISC + 4, vMISC + 5, vMISC + 6, vMISC + 7
        a('v_lshlrev_b32 v%d, 4, v%d' % (vA16, vLANE))
        a('v_lshlrev_b32 v%d, 3, v%d' % (vA8, vLANE))
        a('v_add_u32 v%d, 2560, v%d' % (vB16, vA16))
        a('v_add_u32 v%d, 2560, v%d' % (vB8, vA8))
        a('s_lshl_b32 s%d, s%d, 4' % (sT0, sBR))
        a('s_add_u32 s%d, s%d, s%d' % (sT0, sT0, sRB))
        a('s_lshl_b32 s%d, s%d, 10' % (sT2, sT0))
        a('s_add_u32 s%d, s%d, %d' % (sT2, sT2, WS_FLAG + 256 * 128))
        a('s_lshl_b32 s%d, s%d, 7' % (sT1, sHG))
        a('s_add_u32 s%d, s%d, s%d' % (sT1, sT1, sT2))
        a('s_lshl_b32 s%d, s%d, 3' % (sT0, sT0))
        a('s_add_u32 s%d, s%d, s%d' % (sT0, sT0, sPT))
        a('s_mul_i32 s%d, s%d, 10240' % (sT3, sEX))
        a('s_mul_i32 s%d, s%d, 20480' % (sXO, sT0))
        a('s_add_u32 s%d, s%d, s%d' % (sXO, sXO, sT3))
        a('s_xor_b32 s%d, s%d, 1' % (sT0, sT0))
        a('s_mul_i32 s%d, s%d, 20480' % (sXO + 1, sT0))
        a('s_add_u32 s%d, s%d, s%d' % (sXO + 1, sXO + 1, sT3))
        a('s_lshl_b32 s%d, s%d, 9' % (sT3, sEX))
        a('s_add_u32 s%d, s%d, s%d' % (sT2, sT2, sT3))
        a('s_waitcnt vmcnt(0)')
        self.stamp(a, 'od')
        a('s_barrier')
        self.set_flag(a, sT1)
        row = lambda r: R[self.tmap[r // 64]] + (r % 64) * 160
        frags = []
        pre = {}
        for pp in range(2):
            steps = [(160 * pp, 160 * pp + 16), (160 * pp + 32, 160 * pp + 48), (160 * pp + 80, 160 * pp + 96),
                     (160 * pp + 112, 160 * pp + 128), (160 * pp + 64, 160 * pp + 144)]
            for si, (r0, r1) in enumerate(steps):
                pre[min(len(frags) + D, 49)] = [lambda t='O%d%d' % (pp, si): vm.wait(a, t)]
                for ct in range(5):
                    frags.append((row(r0) + 32 * ct, row(r1) + 32 * ct, vX + 40 * pp + 4 * si,
                                  vX + 40 * pp + 20 + 4 * si, ct, pp == 0 and si == 0))
        for f in frags[:D]:
            pipe.read(f)
        a('v_lshlrev_b32 v%d, 7, v%d' % (vTMP, vLANE))
        self.poll(a, vTMP, vTMP + 1, 0xf, 's%d' % sT2)
        self.stamp(a, 'of')
        for pp in range(2):
            for si, (va, off, n) in enumerate(((vA16, 0, 4), (vA16, 1024, 4), (vB16, 0, 4), (vB16, 1024, 4), (None, 2048, 2))):
                for mt in range(2):
                    b = vX + 40 * pp + 20 * mt + 4 * si
                    if n == 4:
                        a('buffer_load_dwordx4 %s, v%d, %s, s%d offen offset:%d sc1' % (vr(b), va, sr(SWS, 4), sXO + mt, off))
                        vm.add('O%d%d' % (pp, si))
                    else:
                        a('buffer_load_dwordx2 %s, v%d, %s, s%d offen offset:2048 sc1' % (vr(b, 2), vA8, sr(SWS, 4), sXO + mt))
                        a('buffer_load_dwordx2 %s, v%d, %s, s%d offen offset:2048 sc1' % (vr(b + 2, 2), vB8, sr(SWS, 4), sXO + mt))
                        vm.add('O%d%d' % (pp, si), 2)
            if pp == 0:
                a('s_add_u32 s%d, s%d, 5120' % (sXO, sXO))
                a('s_add_u32 s%d, s%d, 5120' % (sXO + 1, sXO + 1))
        pipe.run(frags, pre, {}, start=D)
        self.stamp(a, 'm3')
        self.exch_write(a, exregs)
        a('v_and_b32 v%d, 15, v%d' % (vTMP, vLANE))
        a('v_mul_u32_u24 v%d, 160, v%d' % (vTMP, vTMP))
        a('v_lshrrev_b32 v%d, 4, v%d' % (vTMP + 1, vLANE))
        a('v_lshl_add_u32 v%d, v%d, 3, v%d' % (vTMP, vTMP + 1, vTMP))
        a('v_add_u32 v%d, s%d, v%d' % (vTMP, sT0, vTMP))
        a('s_lshl_b32 s%d, s%d, 3' % (sT0, sRB))
        a('s_add_u32 s%d, s%d, s%d' % (sT0, sT0, sPT))
        a('s_mul_i32 s%d, s%d, %d' % (sT0, sT0, 16 * 2560))
        a('s_mul_i32 s%d, s%d, 1280' % (sT1, sBR))
        a('s_add_u32 s%d, s%d, s%d' % (sT0, sT0, sT1))
        a('s_mul_i32 s%d, s%d, 160' % (sT1, sHG))
        a('s_add_u32 s%d, s%d, s%d' % (sT0, sT0, sT1))
        a('s_waitcnt lgkmcnt(0)')
        self.stamp(a, 'f0')
        a('s_barrier')
        self.stamp(a, 'f1')
        self.exch_read(a)
        self.exch_add_pack(a, vK)
        self.v_to_lds(a, vK, vTMP, 0)
        a('s_waitcnt lgkmcnt(0)')
        self.stamp(a, 'f2')
        for i in range(3):
            a('ds_read_b128 %s, v%d offset:%d' % (vr(vX + 4 * i), vXT + 2, 1024 * i))
        for i in range(3):
            a('s_waitcnt lgkmcnt(%d)' % (2 - i))
            a('buffer_store_dwordx4 %s, v%d, %s, s%d offen' % (vr(vX + 4 * i), vOO + i, sr(SOUT, 4), sT0))
        self.stamp(a, 'f3')
        if self.stamps:
            a('s_waitcnt vmcnt(0)')
            self.stamp(a, 'end')
            self.stamp_out(a)
        if self.opt.get('span'):
            L = self.lab('Lspan')
            a('s_waitcnt vmcnt(0)')
            a('s_memrealtime s[70:71]')
            a('s_cmp_lg_u32 s%d, 7' % sWAVE)
            a('s_cbranch_scc1 %s' % L)
            a('s_waitcnt lgkmcnt(0)')
            a('s_not_b32 s72, s%d' % sCLK)
            a('v_mov_b32 v10, 0')
            a('v_mov_b32 v11, s72')
            a('v_mov_b32 v12, s70')
            a('s_mov_b64 exec, 1')
            a('buffer_atomic_umax v11, v10, %s, 0 offen offset:4' % sr(SDBG, 4))
            a('buffer_atomic_umax v12, v10, %s, 0 offen offset:%d' % (sr(SDBG, 4), 8))
            a('s_waitcnt vmcnt(0)')
            a.label(L)


def build(path, stamps=False, opt=None):
    g = Gen(stamps, opt)
    hdr = open('cdna_kernels/%s.s.ref' % NAME).read().split('; Override')[0]
    kn = NAME + '_kernel'
    txt = hdr
    txt += '; @launch grid=(256,1,1) block=(512,1,1) lds=%d\n' % LDS_BYTES
    txt += HEADER_FMT + kernel_open(kn) + g.kernel() + kernel_desc(kn, 256, 256)
    open(path, 'w').write(txt)


ST1 = ['start', 'b0', 'p0', 'p1', 'kv', 'p2', 'fq', 'o', 'of', 'm3', 'end']
ST2 = ['start', 'b0', 'p0', 'p1', 'e0', 'e2', 'e4', 'kv', 'p2', 'g0', 'fq']
ST3 = ['start', 'kv', 'b11', 'b12', 'b13', 'b14', 'p2', 'q1', 'g0', 'fq', 'g1']
ST4 = ['start', 'p2', 'g1', 'o', 'od', 'of', 'm3', 'f1', 'f2', 'f3', 'end']

if __name__ == '__main__':
    opt = json.loads(sys.argv[1]) if len(sys.argv) > 1 else {}
    tag = sys.argv[2] if len(sys.argv) > 2 else ''
    build('k%s.s' % tag, None, opt)
    for i, st in enumerate((ST1, ST2, ST3, ST4)):
        build('k%s_st%d.s' % (tag, i + 1), st, opt)
```

```python
import sys, struct, json
from asmlib import *

NAME = 'concat_heads__sliding_local_dilated__linear_kernel_hedgehog__prompt'

WS_HALO = 6 << 20
WS_KVP = 7 << 20
KVP_REC = 13568
WS_FLAG = 9 << 20
WS_DBG = 16 << 20
WS_BYTES = 32 << 20
REC_KVB, REC_ZA, REC_ZB = 10240, 12800, 13312

SLOT = 20480
R = [SLOT * i for i in range(8)]
LDS_BYTES = 163840
XAREA = [R[4], R[6], R[4], R[6], R[4]]
WPHI = R[7] + 12288
KBUF = R[7]
HALOV = R[7] + 4 * 2560
VBUF = R[5]
PHI0, PHI1 = R[7], R[3]
KVOP = R[5]
OP_KVB, OP_ZA, OP_ZB, OP_ZERO = 5120, 6400, 6656, 6720

LOG2E = 1.4426950408889634
SCALE = 20 ** -0.5

SX, SW, SWS, SDBG, SAUX, SWO, SOUT = 8, 12, 16, 20, 24, 44, 96
sWAVE, sRB, sHG, sBR = 28, 29, 30, 31
sXO, sWO, sWL, sNONCE = 32, 37, 42, 43
sT0, sT1, sT2, sT3, sT4 = 3, 4, 5, 6, 7
sL2E = 48
sM, sM2 = 50, 52
sGE, sLE = 54, 60
sPOLL, sSAVE = 66, 68
sTS = 70
sWX = 92
sCLK = 94
sHM = 100

vLANE, vTR, vWD, vXO, vXO2, vXR = 0, 1, 4, 9, 10, 11
vXT = 13
vTMP = [16, 32]
vACC = [48, 68]
vK = [88, 100]
vV = [120, 110]
vQ = [130, 140]
vWA, vWB = 112, 128
vPHI = [140, 160]
vEP = [180, 200]
vMISC = 220
aX = 0
FRB = [160 + 4 * i for i in range(8)]
D = 7


def f2u(x):
    return struct.unpack('<I', struct.pack('<f', x))[0]


def vr(b, n=4):
    return 'v[%d:%d]' % (b, b + n - 1)


def ar(b, n=4):
    return 'a[%d:%d]' % (b, b + n - 1)


def sr(b, n=2):
    return 's[%d:%d]' % (b, b + n - 1)


MF = 'v_mfma_f32_16x16x32_bf16'
r4 = lambda b: [b + h for h in range(4)]


class VM:
    def __init__(self):
        self.ops = []

    def add(self, tag, n=1):
        self.ops += [tag] * n

    def mark(self, tag):
        self.ops.append('#' + tag)

    def count(self, *tags):
        last = -1
        for i, t in enumerate(self.ops):
            if t in tags or (t[0] == '#' and t[1:] in tags):
                last = i
        assert last >= 0, tags
        return len([t for t in self.ops[last + 1:] if t[0] != '#'])

    def wait(self, a, *tags):
        a('s_waitcnt vmcnt(%d)' % min(self.count(*tags), 63))


class Pipe:
    def __init__(self, g, a):
        self.g, self.a = g, a
        self.pend = []
        self.nr = 0
        self.q = []

    def extra(self, tag, n):
        self.q += [tag] * n

    def drained(self):
        self.q = []

    def need(self, tag):
        if tag in self.q:
            last = len(self.q) - 1 - self.q[::-1].index(tag)
            k = min(len(self.q) - 1 - last, 15)
            self.a('s_waitcnt lgkmcnt(%d)' % k)
            self.q = self.q[len(self.q) - k:] if k else []

    def read(self, f):
        if len(self.pend) == D + 1:
            self.mfma()
        fb = FRB[self.nr % (D + 1)]
        self.g.tr_read(self.a, fb, f[0])
        self.g.tr_read(self.a, fb + 2, f[1])
        self.q += [self.nr, self.nr]
        self.pend.append((fb, f, self.nr))
        self.nr += 1

    def mfma(self):
        fb, (a0, a1, b0, b1, ct, first), n = self.pend.pop(0)
        self.need(n)
        for mt, b in ((0, b0), (1, b1)):
            acc = vACC[mt] + 4 * ct
            self.a('%s %s, %s, %s, %s' % (MF, vr(acc), ar(fb), ar(b), '0' if first else vr(acc)))
        if self.pend and self.pend[0][2] in self.q:
            self.need(self.pend[min(1, len(self.pend) - 1)][2])

    def run(self, frags, pre, post, start=0, nxt=()):
        allf = list(frags) + list(nxt)[:D]
        for i in range(start, len(allf)):
            for e in pre.get(i, ()):
                e()
            self.read(allf[i])
            while len(self.pend) > D:
                self.mfma()
            for e in post.get(i, ()):
                e()
        keep = len(allf) - len(frags)
        while len(self.pend) > keep:
            self.mfma()
        return keep


class Rec:
    def __init__(self):
        self.lines = []

    def __call__(self, t):
        self.lines += t.split('\n')


def both(fn):
    r0, r1 = Rec(), Rec()
    fn(r0, 0)
    fn(r1, 1)
    assert len(r0.lines) == len(r1.lines)
    out = []
    for x, y in zip(r0.lines, r1.lines):
        out.append(x)
        if not (x == y and x.startswith('s_')):
            out.append(y)
    return out


class Gen:
    def __init__(self, stamps=False, opt=None):
        self.stamps = stamps
        self.nlab = 0
        self.opt = opt or {}

    def lab(self, p='L'):
        self.nlab += 1
        return '%s_%d' % (p, self.nlab)

    def stamp(self, a, i):
        if self.stamps and i in self.stamps:
            a('s_memrealtime %s' % sr(sTS + 2 * self.stamps.index(i)))

    def stamp_out(self, a):
        L = self.lab('Lst')
        T = vTMP[0]
        a('s_waitcnt lgkmcnt(0)')
        a('s_cmp_lg_u32 s%d, %d' % (sWAVE, self.opt.get('stwave', 3)))
        a('s_cbranch_scc1 %s' % L)
        a('s_lshl_b32 s%d, s2, 6' % sT0)
        a('s_add_u32 s%d, s%d, %d' % (sT0, sT0, WS_DBG))
        a('v_mov_b32 v%d, 0' % T)
        a('s_mov_b64 exec, 1')
        for i in range(len(self.stamps)):
            a('v_mov_b32 v%d, s%d' % (T + 1, sTS + 2 * i))
            a('buffer_store_dword v%d, v%d, %s, s%d offen offset:%d' % (T + 1, T, sr(SWS, 4), sT0, 4 * i))
        a('s_mov_b64 exec, -1')
        a.label(L)

    def emit(self, a, lines):
        for x in lines:
            a(x)

    def srd(self, a, d, src, nbytes):
        a('s_mov_b32 s%d, s%d' % (d, src))
        a('s_mov_b32 s%d, s%d' % (d + 1, src + 1))
        a('s_mov_b32 s%d, %d' % (d + 2, nbytes))
        a('s_mov_b32 s%d, 0x20000' % (d + 3))

    def mask(self, a, s, val):
        a('s_mov_b32 s%d, 0x%x' % (s, val & 0xffffffff))
        a('s_mov_b32 s%d, 0x%x' % (s + 1, (val >> 32) & 0xffffffff))

    def div10(self, a, vq, vrow, vc):
        a('v_mul_u32_u24 v%d, 6554, v%d' % (vrow, vq))
        a('v_lshrrev_b32 v%d, 16, v%d' % (vrow, vrow))
        a('v_mul_u32_u24 v%d, 10, v%d' % (vc, vrow))
        a('v_sub_u32 v%d, v%d, v%d' % (vc, vq, vc))

    def tr_read(self, a, dst, ldsaddr):
        b = ldsaddr // 61440
        off = ldsaddr - b * 61440
        assert off < 65536 and b < 3
        a('ds_read_b64_tr_b16 %s, v%d offset:%d' % (ar(dst, 2), vTR + b, off))

    def item(self, a, vm, it):
        kind, s, i = it
        if kind == 'S':
            part = (1280, 2560, 0)[s // 5]
            self.dma1(a, SW, sWO + s % 5, part, R[self.sreg[s]], i)
            vm.add('S%d' % s)
        elif kind == 'T':
            self.dma1(a, SWO, sWO, s * 128 * 1280, R[self.tmap[s]], i)
            vm.add('T%d' % s)
        elif kind == 'X':
            a('s_add_u32 m0, s%d, %d' % (sWX, XAREA[s] + 1024 * i))
            add = (i >> 2) * 128 + ((i >> 1) & 1) * 20480
            ss = sXO + s
            if add:
                a('s_add_u32 s%d, s%d, %d' % (sT4, sXO + s, add))
                ss = sT4
            a('buffer_load_dwordx4 v%d, %s, s%d offen lds' % (vXO2 if i & 1 else vXO, sr(SX, 4), ss))
            vm.add('X%d' % s)
        elif kind == 'F':
            a('s_lshl_b32 s%d, s%d, 10' % (sT1, sWAVE))
            a('s_mul_i32 s%d, s%d, 3200' % (sT0, sHG))
            a('s_add_u32 s%d, s%d, s%d' % (sT0, sT0, sT1))
            a('s_add_u32 m0, s%d, %d' % (sT1, WPHI))
            a('v_lshlrev_b32 v%d, 4, v%d' % (vXT, vLANE))
            a('buffer_load_dwordx4 v%d, %s, s%d offen lds' % (vXT, sr(SAUX, 4), sT0))
            vm.add('WPHI')
        elif kind == 'O':
            self.wo_offsets(a)
        elif kind == 'P':
            T = vXT
            a('s_mul_i32 s%d, s%d, 50' % (sT4, sWAVE))
            a('v_add_u32 v%d, s%d, v%d' % (T, sT4, vLANE))
            a('v_mul_u32_u24 v%d, 13108, v%d' % (T + 1, T))
            a('v_lshrrev_b32 v%d, 16, v%d' % (T + 1, T + 1))
            a('v_mul_u32_u24 v%d, %d, v%d' % (T + 2, 1280 - 5 * 128, T + 1))
            a('v_lshl_add_u32 v%d, v%d, 7, v%d' % (T + 2, T, T + 2))
            a('v_cmp_gt_u32 vcc, 50, v%d' % vLANE)
            a('v_mov_b32 v%d, 0x7ffffff0' % (T + 1))
            a('v_cndmask_b32 v%d, v%d, v%d, vcc' % (T + 2, T + 1, T + 2))
            a('s_bfe_u32 s%d, s2, 0x40004' % sT4)
            a('s_mul_i32 s%d, s%d, %d' % (sT4, sT4, 40 * 1280))
            a('s_lshr_b32 s%d, s%d, 2' % (sT3, sHG))
            a('s_mul_i32 s%d, s%d, 640' % (sT3, sT3))
            a('s_add_u32 s%d, s%d, s%d' % (sT4, sT4, sT3))
            a('buffer_load_dword v%d, v%d, %s, s%d offen' % (vXO, T + 2, sr(SWO, 4), sT4))
            vm.add('P')

    def dma1(self, a, srd, sbase, add, ldsbase, i):
        a('s_add_u32 m0, s%d, %d' % (sWL, ldsbase + 1024 * i))
        ss = sbase
        if add:
            a('s_add_u32 s%d, s%d, %d' % (sT4, sbase, add))
            ss = sT4
        a('buffer_load_dwordx4 v%d, %s, s%d offen lds' % (vWD + i, sr(srd, 4), ss))

    def group(self, kind, s):
        return [(kind, s, i) for i in range(8 if kind == 'X' else 5)]

    def xread(self, a, vm, pipe, u, wait=True):
        if wait:
            vm.wait(a, 'X%d' % u)
        for t in range(4):
            for mt in range(2):
                a('ds_read_b128 %s, v%d offset:%d' % (ar(aX + 32 * u + 8 * t + 4 * mt), vXR + (t & 1),
                                                      XAREA[u] - R[4] + 4096 * (t >> 1) + 2048 * mt))
        pipe.extra('XR%d' % u, 8)

    def pass_frags(self, p):
        fr = []
        for u in range(5):
            base = R[self.sreg[5 * p + u]]
            for t in range(4):
                for ct in range(5):
                    a0 = base + t * 5120 + ct * 32
                    fr.append((a0, a0 + 2560, aX + 32 * u + 8 * t, aX + 32 * u + 8 * t + 4, ct, u == 0 and t == 0))
        return fr

    def ready(self, a, vm, s, extra):
        def f():
            tags = ['S%d' % s] + (['X0'] if s == 0 else []) + extra.get(('wait', s), [])
            for e in extra.get(('pre', s), ()):
                e()
            self.stamp(a, 'w%d' % s)
            vm.wait(a, *tags)
            self.stamp(a, 'x%d' % s)
            a('s_barrier')
            self.stamp(a, 'b%d' % s)
            for e in extra.get(('post', s), ()):
                e()
        return f

    def gemm_pass(self, a, vm, pipe, p, sched, extra, start, prenext):
        pre, post = {}, {}
        for u in range(5):
            if not (u == 0 and start):
                pre.setdefault(20 * u, []).append(self.ready(a, vm, 5 * p + u, extra))
        for slot, es in sched.items():
            assert slot >= start, slot
            for e in es:
                post.setdefault(slot, []).append((lambda e=e: self.item(a, vm, e)) if isinstance(e, tuple) else e)
        nxt = ()
        if prenext:
            pre.setdefault(100, []).append(self.ready(a, vm, 5 * p + 5, extra))
            nxt = self.pass_frags(p + 1)
        return pipe.run(self.pass_frags(p), pre, post, start, nxt)

    @staticmethod
    def put(sched, slots, items):
        for s, it in zip(slots, items):
            sched.setdefault(s, []).append(it)

    def over(self, sched, lo, hi, items):
        for k, it in enumerate(items):
            sched.setdefault(lo + k * (hi - lo) // len(items), []).append(it)

    def spread(self, a, sched, lines, lo, hi):
        n = hi - lo
        for c in range(n):
            part = lines[c * len(lines) // n:(c + 1) * len(lines) // n]
            sched.setdefault(lo + c, []).append(lambda part=part: [a(x) for x in part])

    def pack(self, a, mt, dst):
        for ct in range(5):
            a('v_cvt_pk_bf16_f32 v%d, v%d, v%d' % (dst + 2 * ct, vACC[mt] + 4 * ct, vACC[mt] + 4 * ct + 1))
            a('v_cvt_pk_bf16_f32 v%d, v%d, v%d' % (dst + 2 * ct + 1, vACC[mt] + 4 * ct + 2, vACC[mt] + 4 * ct + 3))

    def reduce4(self, a, *sets):
        for op, m, z in sets:
            a('v_permlane32_swap_b32 v%d, v%d' % (m[0], m[2]))
            a('v_permlane32_swap_b32 v%d, v%d' % (m[1], m[3]))
        for op, m, z in sets:
            a('%s v%d, v%d, v%d' % (op, m[0], m[0], m[2]))
            a('%s v%d, v%d, v%d' % (op, m[1], m[1], m[3]))
        for op, m, z in sets:
            a('v_permlane16_swap_b32 v%d, v%d' % (m[0], m[1]))
        for op, m, z in sets:
            a('%s v%d, v%d, v%d' % (op, z, m[0], m[1]))

    def bcast4(self, a, *zo):
        for z, o in zo:
            a('v_mov_b32 v%d, v%d' % (o[0], z))
            a('v_mov_b32 v%d, v%d' % (o[1], z))
        for z, o in zo:
            a('v_permlane16_swap_b32 v%d, v%d' % (o[0], o[1]))
        for z, o in zo:
            a('v_mov_b32 v%d, v%d' % (o[2], o[0]))
            a('v_mov_b32 v%d, v%d' % (o[3], o[1]))
        for z, o in zo:
            a('v_permlane32_swap_b32 v%d, v%d' % (o[0], o[2]))
            a('v_permlane32_swap_b32 v%d, v%d' % (o[1], o[3]))

    def poll(self, a, vaddr, vdat, lanes_mask, soff):
        L, Ld = self.lab('Lpoll'), self.lab('Lpd')
        self.mask(a, sSAVE, lanes_mask)
        a('s_mov_b64 exec, %s' % sr(sSAVE))
        a('s_mov_b32 s%d, 0' % sPOLL)
        a.label(L)
        a('buffer_load_dword v%d, v%d, %s, %s offen sc1' % (vdat, vaddr, sr(SWS, 4), soff))
        a('s_waitcnt vmcnt(0)')
        a('v_cmp_ne_u32 vcc, s%d, v%d' % (sNONCE, vdat))
        a('s_cbranch_vccz %s' % Ld)
        a('s_add_u32 s%d, s%d, 1' % (sPOLL, sPOLL))
        a('s_cmp_lt_u32 s%d, 0x40000' % sPOLL)
        a('s_cbranch_scc1 %s' % L)
        a.label(Ld)
        a('s_mov_b64 exec, -1')

    def set_flag(self, a, sidx):
        L = self.lab('Lfl')
        a('s_cmp_lg_u32 s%d, 0' % sWAVE)
        a('s_cbranch_scc1 %s' % L)
        a('v_mov_b32 v%d, 0' % vXT)
        a('v_mov_b32 v%d, s%d' % (vXT + 1, sNONCE))
        a('s_mov_b64 exec, 1')
        a('buffer_store_dword v%d, v%d, %s, s%d offen sc1' % (vXT + 1, vXT, sr(SWS, 4), sidx))
        a('s_mov_b64 exec, -1')
        a.label(L)

    def nonce_read(self, a, vm):
        a('v_mov_b32 v%d, 0' % vK[0])
        a('s_mov_b64 exec, 1')
        a('buffer_load_dword v%d, v%d, %s, 0 offen sc1' % (vK[0] + 1, vK[0], sr(SDBG, 4)))
        a('s_mov_b64 exec, -1')
        vm.add('NONCE')

    def nonce_get(self, a, vm):
        L, Ld = self.lab('Lng'), self.lab('Lngd')
        vm.wait(a, 'NONCE')
        a('s_mov_b32 s%d, 0' % sPOLL)
        a.label(L)
        a('v_readfirstlane_b32 s%d, v%d' % (sNONCE, vK[0] + 1))
        a('s_cmp_lg_u32 s%d, 0' % sNONCE)
        a('s_cbranch_scc1 %s' % Ld)
        a('s_mov_b64 exec, 1')
        a('buffer_load_dword v%d, v%d, %s, 0 offen sc1' % (vK[0] + 1, vK[0], sr(SDBG, 4)))
        a('s_mov_b64 exec, -1')
        a('s_waitcnt vmcnt(0)')
        a('s_add_u32 s%d, s%d, 1' % (sPOLL, sPOLL))
        a('s_cmp_lt_u32 s%d, 0x40000' % sPOLL)
        a('s_cbranch_scc1 %s' % L)
        a.label(Ld)

    def wo_offsets(self, a):
        T = vXT
        for i in range(5):
            a('v_add_u32 v%d, %d, v%d' % (T, 64 * i, vLANE))
            self.div10(a, T, T + 1, T + 2)
            a('v_mul_u32_u24 v%d, 1280, v%d' % (T + 1, T + 1))
            a('v_lshl_add_u32 v%d, v%d, 4, v%d' % (vWD + i, T + 2, T + 1))
        a('s_mul_i32 s%d, s%d, %d' % (sWO, sWAVE, 32 * 1280))
        a('s_mul_i32 s%d, s%d, 160' % (sT4, sHG))
        a('s_add_u32 s%d, s%d, s%d' % (sWO, sWO, sT4))

    def kernel(self):
        a = Asm()
        a('s_cmp_ge_u32 s2, 256')
        a('s_cbranch_scc1 L_END')
        a('s_load_dwordx16 s[44:59], s[0:1], 0')
        a('s_load_dwordx4 s[60:63], s[0:1], 64')
        a('s_memrealtime %s' % sr(sCLK))
        self.stamp(a, 'start')
        if self.opt.get('cpf', 1):
            a.label('L_PC')
            a('s_getpc_b64 s[64:65]')
            a('s_lshr_b32 s3, s2, 3')
            a('v_lshl_add_u32 v1, s3, 4, v0')
            a('v_cmp_gt_u32 vcc, (L_CODE_END-L_PC)/128, v1')
            a('v_cmp_gt_u32_e64 s[66:67], 16, v0')
            a('s_and_b64 vcc, vcc, s[66:67]')
            a('v_lshlrev_b32 v1, 7, v1')
            a('v_mov_b32 v3, s65')
            a('v_add_co_u32 v2, s[66:67], s64, v1')
            a('v_addc_co_u32 v3, s[66:67], 0, v3, s[66:67]')
            a('s_and_saveexec_b64 s[66:67], vcc')
            a('s_cbranch_execz L_CPF')
            a('global_load_dword v255, v[2:3], off')
            a.label('L_CPF')
            a('s_mov_b64 exec, -1')
        a('s_bitcmp0_b32 s2, 3')
        a('s_cbranch_scc1 L_A')
        for br in (1, 0):
            if br == 0:
                a.label('L_A')
            vm = VM()
            self.sreg = {0: 0, 1: 1, 2: 2, 3: 3, 4: 0, 5: 1, 6: 2, 7: 4, 8: 5, 9: 6, 10: 3, 11: 0, 12: 1, 13: 2, 14: 4}
            if br:
                self.sreg.update({10: 0, 11: 1, 12: 2, 13: 4, 14: 6})
            self.tmap = {0: 3, 1: 7, 2: 0, 3: 1, 4: 2} if br else {0: 6, 1: 3, 2: 0, 3: 1, 4: 2}
            self.prologue(a, vm, br)
            if br:
                self.branch_b(a, vm)
                a('s_endpgm')
            else:
                self.branch_a(a, vm)
        a.label('L_END')
        a('s_endpgm')
        a.label('L_CODE_END')
        return a.finish()

    def prologue(self, a, vm, br):
        a('s_mov_b32 s%d, %d' % (sBR, br))
        a('s_and_b32 s%d, s2, 3' % sRB)
        a('s_lshl_b32 s%d, s%d, 2' % (sRB, sRB))
        a('s_bfe_u32 s%d, s2, 0x20004' % sT2)
        a('s_add_u32 s%d, s%d, s%d' % (sRB, sRB, sT2))
        a('s_and_b32 s%d, s2, 4' % sHG)
        a('s_bfe_u32 s%d, s2, 0x20006' % sT3)
        a('s_add_u32 s%d, s%d, s%d' % (sHG, sHG, sT3))
        a('v_lshrrev_b32 v%d, 6, v0' % vXT)
        a('v_readfirstlane_b32 s%d, v%d' % (sWAVE, vXT))
        a('v_and_b32 v%d, 63, v0' % vLANE)
        a('s_add_u32 s%d, s%d, s%d' % (sT2, sT2, sT3))
        a('s_and_b32 s%d, s2, 3' % sT3)
        a('s_add_u32 s%d, s%d, s%d' % (sT2, sT2, sT3))
        a('s_bfe_u32 s%d, s2, 0x10002' % sT3)
        a('s_lshl_b32 s%d, s%d, 1' % (sT3, sT3))
        a('s_add_u32 s%d, s%d, s%d' % (sT2, sT2, sT3))
        for lim in (10, 5):
            a('s_cmp_ge_u32 s%d, %d' % (sT2, lim))
            a('s_cselect_b32 s%d, %d, 0' % (sT3, lim))
            a('s_sub_u32 s%d, s%d, s%d' % (sT2, sT2, sT3))
        a('s_lshl_b32 s%d, s%d, 2' % (sT0, sRB))
        a('s_add_u32 s%d, s%d, s%d' % (sT0, sT0, sWAVE))
        a('s_mul_i32 s%d, s%d, 40960' % (sT0, sT0))
        a('s_mul_i32 s%d, s%d, 160' % (sT1, sHG))
        for u in range(5):
            a('s_lshl_b32 s%d, s%d, 8' % (sXO + u, sT2))
            a('s_add_u32 s%d, s%d, s%d' % (sXO + u, sXO + u, sT0))
            a('s_mul_i32 s%d, s%d, %d' % (sWO + u, sT2, 128 * 3840))
            a('s_add_u32 s%d, s%d, s%d' % (sWO + u, sWO + u, sT1))
            if u < 4:
                a('s_add_u32 s%d, s%d, 1' % (sT2, sT2))
                a('s_cmp_ge_u32 s%d, 5' % sT2)
                a('s_cselect_b32 s%d, 0, s%d' % (sT2, sT2))
        a('s_mul_i32 s%d, s%d, 5120' % (sWL, sWAVE))
        a('s_lshl_b32 s%d, s%d, 13' % (sWX, sWAVE))
        T = vTMP[0]
        a('v_lshrrev_b32 v%d, 3, v%d' % (T, vLANE))
        a('v_lshrrev_b32 v%d, 4, v%d' % (T + 1, vLANE))
        a('v_and_b32 v%d, 7, v%d' % (T + 2, vLANE))
        a('v_xor_b32 v%d, v%d, v%d' % (T + 1, T + 1, T + 2))
        a('v_mul_u32_u24 v%d, 1280, v%d' % (T, T))
        a('v_lshl_add_u32 v%d, v%d, 4, v%d' % (vXO, T + 1, T))
        a('v_xor_b32 v%d, 64, v%d' % (vXO2, vXO))
        a('v_add_u32 v%d, 10240, v%d' % (vXO2, vXO2))
        a('s_mul_i32 s%d, s%d, %d' % (sT0, sWAVE, 32 * 3840))
        for i in range(5):
            a('v_add_u32 v%d, %d, v%d' % (T, 64 * i, vLANE))
            self.div10(a, T, T + 1, T + 2)
            a('v_and_b32 v%d, 12, v%d' % (T + 3, T + 1))
            a('v_lshrrev_b32 v%d, 2, v%d' % (T + 4, T + 1))
            a('v_and_b32 v%d, 4, v%d' % (T + 4, T + 4))
            a('v_and_b32 v%d, 3, v%d' % (T + 1, T + 1))
            a('v_lshl_add_u32 v%d, v%d, 1, v%d' % (T + 1, T + 3, T + 1))
            a('v_add_u32 v%d, v%d, v%d' % (T + 1, T + 1, T + 4))
            a('v_mul_u32_u24 v%d, 3840, v%d' % (T + 1, T + 1))
            a('v_lshlrev_b32 v%d, 4, v%d' % (T + 2, T + 2))
            a('v_add3_u32 v%d, v%d, v%d, s%d' % (vWD + i, T + 1, T + 2, sT0))
        a('s_waitcnt lgkmcnt(0)')
        self.srd(a, SX, 50 if br else 44, 2621440)
        self.srd(a, SW, 52 if br else 46, 2457600)
        for it in self.group('S', 0) + self.group('X', 0):
            self.item(a, vm, it)
        self.stamp(a, 'i0')
        self.srd(a, SDBG, 60, 256)
        self.srd(a, SWS, 62, WS_BYTES)
        if br:
            self.srd(a, SAUX, 54, 25600)
        self.srd(a, SWO, 56 if br else 48, 819200)
        self.srd(a, SOUT, 58, 5242880)
        if br == 0:
            Ln = self.lab('Lnonce')
            a('s_or_b32 s%d, s2, s%d' % (sT0, sWAVE))
            a('s_cmp_lg_u32 s%d, 0' % sT0)
            a('s_cbranch_scc1 %s' % Ln)
            a('s_or_b32 s%d, s%d, 1' % (sNONCE, sCLK))
            a('v_mov_b32 v%d, s%d' % (vK[0], sNONCE))
            a('v_mov_b32 v%d, 0' % (vK[0] + 1))
            a('s_mov_b64 exec, 1')
            a('buffer_store_dword v%d, v%d, %s, 0 offen sc1' % (vK[0], vK[0] + 1, sr(SDBG, 4)))
            a('s_mov_b64 exec, -1')
            a.label(Ln)
        a('v_and_b32 v%d, 15, v%d' % (T, vLANE))
        a('v_lshrrev_b32 v%d, 1, v%d' % (T + 1, T))
        a('v_lshrrev_b32 v%d, 4, v%d' % (T + 2, vLANE))
        a('v_xor_b32 v%d, v%d, v%d' % (T + 1, T + 1, T + 2))
        a('v_lshlrev_b32 v%d, 7, v%d' % (T, T))
        a('v_lshl_add_u32 v%d, v%d, 4, v%d' % (T, T + 1, T))
        a('s_add_u32 s%d, s%d, %d' % (sT0, sWX, R[4]))
        a('v_add_u32 v%d, s%d, v%d' % (vXR, sT0, T))
        a('v_xor_b32 v%d, 64, v%d' % (vXR + 1, vXR))
        a('v_lshrrev_b32 v%d, 2, v%d' % (T, vLANE))
        a('v_mul_u32_u24 v%d, 160, v%d' % (T, T))
        a('v_and_b32 v%d, 3, v%d' % (T + 1, vLANE))
        a('v_lshl_add_u32 v%d, v%d, 3, v%d' % (vTR, T + 1, T))
        a('v_add_u32 v%d, 61440, v%d' % (vTR + 1, vTR))
        a('v_add_u32 v%d, 122880, v%d' % (vTR + 2, vTR))
        for h in (1, 2, 3):
            self.mask(a, sGE + 2 * (h - 1), (~0 << (16 * h)))
        for h in (0, 1, 2):
            self.mask(a, sLE + 2 * h, (1 << (16 * (h + 1))) - 1)
        a('s_mov_b32 s%d, 0x%x' % (sL2E, f2u(LOG2E)))
        a('s_mov_b32 s%d, 0x%x' % (sL2E + 1, f2u(LOG2E)))

    def second_group(self, a, vm):
        a('s_barrier')
        for it in self.group('S', 1) + self.group('X', 1):
            self.item(a, vm, it)
        self.stamp(a, 'i1')

    def sched0(self, a, vm, pipe, extra, br):
        g = self.group
        s = {}
        need = lambda t: (lambda: pipe.need(t))
        xr = lambda u: (lambda: self.xread(a, vm, pipe, u))
        extra.setdefault(('post', 0), []).append(lambda: self.xread(a, vm, pipe, 0, wait=False))
        self.over(s, 0, 5, g('S', 2))
        self.put(s, (5,), [need('XR0')])
        self.over(s, 5, 13, g('X', 2))
        self.put(s, (13,), [xr(1)])
        self.put(s, (18,), [need('XR1')])
        self.over(s, 18, 26, g('X', 3))
        self.over(s, 26, 32, g('S', 3))
        self.put(s, (33,), [xr(2)])
        if br:
            self.put(s, (35,), [('F', 0, 0)])
        self.put(s, (38,), [need('XR2')])
        self.over(s, 38, 46, g('X', 4))
        self.over(s, 46, 52, g('S', 4))
        self.put(s, (53,), [xr(3)])
        self.over(s, 60, 70, g('S', 5))
        self.put(s, (72,), [xr(4)])
        extra.setdefault(('pre', 4), []).append(need('XR4'))
        self.over(s, 80, 100, g('S', 6) + g('S', 7))
        self.put(s, (56, 98), [lambda: self.nonce_read(a, vm), lambda: self.nonce_get(a, vm)])
        return s

    def sched1(self, br):
        g = self.group
        s = {}
        self.over(s, 7, 20, g('S', 8))
        for u in range(1, 5):
            self.over(s, 20 * u + 1, 20 * u + 19, g('S', 8 + u))
        self.put(s, (59,), [('P', 0, 0)])
        return s

    def o_base(self, a):
        a('s_lshl_b32 s%d, s%d, 4' % (sT0, sBR))
        a('s_add_u32 s%d, s%d, s%d' % (sT0, sT0, sRB))
        a('s_lshl_b32 s%d, s%d, 2' % (sT0, sT0))
        a('s_add_u32 s%d, s%d, s%d' % (sT0, sT0, sWAVE))
        a('s_mul_i32 s%d, s%d, 40960' % (sT0, sT0))

    def store_o(self, a, regs):
        self.o_base(a)
        a('s_mul_i32 s%d, s%d, 2560' % (sT1, sHG))
        a('s_add_u32 s%d, s%d, s%d' % (sT0, sT0, sT1))
        a('s_add_u32 s%d, s%d, 20480' % (sT1, sT0))
        a('v_lshlrev_b32 v%d, 4, v%d' % (vXT, vLANE))
        a('v_lshlrev_b32 v%d, 3, v%d' % (vXT + 1, vLANE))
        for mt, so in ((0, sT0), (1, sT1)):
            reg = regs[mt]
            a('buffer_store_dwordx4 %s, v%d, %s, s%d offen sc1' % (vr(reg), vXT, sr(SWS, 4), so))
            a('buffer_store_dwordx4 %s, v%d, %s, s%d offen offset:1024 sc1' % (vr(reg + 4), vXT, sr(SWS, 4), so))
            a('buffer_store_dwordx2 %s, v%d, %s, s%d offen offset:2048 sc1' % (vr(reg + 8, 2), vXT + 1, sr(SWS, 4), so))

    def v_to_lds(self, a, reg, vaddr, base):
        for ct in range(5):
            a('ds_write_b64 v%d, %s offset:%d' % (vaddr, vr(reg + 2 * ct, 2), base + 32 * ct))

    def select_pack(self, a, lo, hi, dst):
        for ct in range(5):
            parts = []
            if ct <= 3:
                parts.append((lo[ct], None if ct == 0 else sGE + 2 * (ct - 1)))
            if ct >= 1:
                parts.append((hi[ct - 1], None if ct == 4 else sLE + 2 * (ct - 1)))
            for acc, m in parts:
                if m is not None:
                    a('s_mov_b64 exec, %s' % sr(m))
                elif ct == 4:
                    a('s_mov_b64 exec, -1')
                a('v_cvt_pk_bf16_f32 v%d, v%d, v%d' % (dst + 2 * ct, acc, acc + 1))
                a('v_cvt_pk_bf16_f32 v%d, v%d, v%d' % (dst + 2 * ct + 1, acc + 2, acc + 3))

    def head_mask(self, a, dst, src):
        for h in range(4):
            for i in range(2):
                if h == 0:
                    a('v_mov_b32 v%d, v%d' % (dst + i, src + i))
                else:
                    a('v_cndmask_b32_e64 v%d, 0, v%d, %s' % (dst + 4 * h + i, src + 2 * h + i, sr(sGE + 2 * (h - 1))))
            for i in range(2):
                if h == 3:
                    a('v_mov_b32 v%d, v%d' % (dst + 14 + i, src + 8 + i))
                else:
                    a('v_cndmask_b32_e64 v%d, 0, v%d, %s' % (dst + 4 * h + 2 + i, src + 2 * h + 2 + i, sr(sLE + 2 * h)))

    def lane_common(self, a, vPOS, vG, vVW, vTRS):
        T = vTMP[0]
        a('v_and_b32 v%d, 15, v%d' % (vPOS, vLANE))
        a('v_lshrrev_b32 v%d, 4, v%d' % (vG, vLANE))
        a('v_mul_u32_u24 v%d, 160, v%d' % (vVW, vPOS))
        a('v_lshrrev_b32 v%d, 2, v%d' % (T, vPOS))
        a('v_xor_b32 v%d, v%d, v%d' % (T, T, vG))
        a('v_lshl_add_u32 v%d, v%d, 3, v%d' % (vVW, T, vVW))
        a('v_lshlrev_b32 v%d, 3, v%d' % (T, vG))
        a('v_xor_b32 v%d, v%d, v%d' % (vTRS, T, vTR))

    def branch_a(self, a, vm):
        pipe = Pipe(self, a)
        vKW, vVW, vBC, vBP, vMC, vVP, vVC, vBP0 = (vMISC + x for x in (0, 1, 2, 6, 10, 14, 15, 16))
        vPOS, vG4, vTRS = vMISC + 20, vMISC + 21, vMISC + 22
        T = vTMP[0]
        self.lane_common(a, vPOS, vG4, vVW, vTRS)
        a('s_mul_i32 s%d, s%d, 2560' % (sT0, sWAVE))
        a('s_add_u32 s%d, s%d, %d' % (sT0, sT0, KBUF))
        a('v_lshl_add_u32 v%d, v%d, 3, s%d' % (vKW, vLANE, sT0))
        a('v_lshlrev_b32 v%d, 2, v%d' % (vG4, vG4))
        NEG = f2u(-1e30)
        a('v_mov_b32 v%d, 0x%x' % (T, NEG))
        for r in range(4):
            a('v_sub_u32 v%d, v%d, v%d' % (T + 1, vPOS, vG4))
            a('v_subrev_u32 v%d, %d, v%d' % (T + 1, r, T + 1))
            a('v_and_b32 v%d, 0x80000001, v%d' % (T + 2, T + 1))
            a('v_cmp_eq_u32 vcc, 0, v%d' % (T + 2))
            a('v_cndmask_b32_e64 v%d, v%d, 0, vcc' % (vBC + r, T))
            a('v_cmp_eq_u32 vcc, 0x80000000, v%d' % (T + 2))
            a('v_cndmask_b32_e64 v%d, v%d, 0, vcc' % (vBP + r, T))
            a('v_mov_b32 v%d, v%d' % (vBP0 + r, vBP + r))
        a('v_and_b32 v%d, 1, v%d' % (T + 1, vPOS))
        a('v_lshlrev_b32 v%d, 4, v%d' % (T + 2, T + 1))
        a('v_mov_b32 v%d, 0xffff' % (T + 3))
        a('v_lshlrev_b32 v%d, v%d, v%d' % (T + 3, T + 2, T + 3))
        for j in range(2):
            a('v_add_u32 v%d, %d, v%d' % (T + 2, 2 * j, vG4))
            a('v_cmp_le_u32 vcc, v%d, v%d' % (T + 2, vPOS))
            a('v_cndmask_b32_e64 v%d, 0, v%d, vcc' % (vMC + 2 + j, T + 3))
            a('v_cndmask_b32_e64 v%d, v%d, 0, vcc' % (vMC + j, T + 3))
        a('s_add_u32 s%d, s%d, %d' % (sT0, sWL, VBUF))
        a('v_add_u32 v%d, s%d, v%d' % (vVC, sT0, vTRS))
        a('s_sub_u32 s%d, s%d, 2560' % (sT0, sT0))
        a('s_cmp_eq_u32 s%d, 0' % sWAVE)
        a('s_cselect_b32 s%d, %d, s%d' % (sT0, HALOV, sT0))
        a('v_add_u32 v%d, s%d, v%d' % (vVP, sT0, vTRS))
        self.second_group(a, vm)

        def flag_halo():
            a('s_lshl_b32 s%d, s%d, 3' % (sT1, sRB))
            a('s_add_u32 s%d, s%d, s%d' % (sT1, sT1, sHG))
            a('s_lshl_b32 s%d, s%d, 7' % (sT1, sT1))
            a('s_add_u32 s%d, s%d, %d' % (sT1, sT1, WS_FLAG))
            self.set_flag(a, sT1)

        extra = {('wait', 12): ['HALO'], ('post', 12): [flag_halo]}
        st = self.gemm_pass(a, vm, pipe, 0, self.sched0(a, vm, pipe, extra, 0), extra, 0, True)
        self.stamp(a, 'p0')
        self.emit(a, both(lambda r, mt: self.pack(r, mt, vK[mt])))
        for ct in range(5):
            a('ds_write_b64 v%d, %s offset:%d' % (vKW, vr(vK[1] + 2 * ct, 2), 512 * ct))
        pipe.extra('KW', 5)
        st = self.gemm_pass(a, vm, pipe, 1, self.sched1(0), extra, st, True)
        self.stamp(a, 'p1')
        self.emit(a, both(lambda r, mt: self.pack(r, mt, vV[mt])))
        a('s_add_u32 s%d, s%d, %d' % (sT0, sWL, VBUF))
        a('v_add_u32 v%d, s%d, v%d' % (T, sT0, vVW))
        for mt in range(2):
            self.v_to_lds(a, vV[mt], T, 2560 * mt)
        pipe.extra('VW', 10)
        Lh = self.lab('Lhalo')
        a('s_cmp_lg_u32 s%d, 3' % sWAVE)
        a('s_cbranch_scc1 %s' % Lh)
        a('s_lshl_b32 s%d, s%d, 3' % (sT0, sRB))
        a('s_add_u32 s%d, s%d, s%d' % (sT0, sT0, sHG))
        a('s_mul_i32 s%d, s%d, 5120' % (sT0, sT0))
        a('s_add_u32 s%d, s%d, %d' % (sT0, sT0, WS_HALO))
        a('v_lshlrev_b32 v%d, 4, v%d' % (T + 1, vLANE))
        for i in range(5):
            if i == 4:
                a('s_add_u32 s%d, s%d, 4096' % (sT0, sT0))
            a('buffer_store_dwordx4 %s, v%d, %s, s%d offen offset:%d sc1' % (
                vr(vK[1] + 4 * i), T + 1, sr(SWS, 4), sT0, (1024 * i) % 4096))
        a.label(Lh)
        vm.mark('HALO')
        vKP = 150

        def halo_slot():
            a('s_lshl_b32 s%d, s%d, 3' % (sT1, sRB))
            a('s_add_u32 s%d, s%d, s%d' % (sT1, sT1, sHG))
            a('s_sub_u32 s%d, s%d, 8' % (sT1, sT1))
            a('s_max_i32 s%d, s%d, 0' % (sT1, sT1))
            a('s_lshl_b32 s%d, s%d, 7' % (sT2, sT1))
            a('s_add_u32 s%d, s%d, %d' % (sT2, sT2, WS_FLAG))

        def probe():
            halo_slot()
            a('v_mov_b32 v%d, 0' % (T + 2))
            a('s_mov_b64 exec, 1')
            a('buffer_load_dword v%d, v%d, %s, s%d offen sc1' % (T + 3, T + 2, sr(SWS, 4), sT2))
            a('s_mov_b64 exec, -1')
            vm.add('PROBE')

        def halo_loads():
            a('s_mul_i32 s%d, s%d, 5120' % (sT0, sT1))
            a('s_add_u32 s%d, s%d, %d' % (sT0, sT0, WS_HALO))
            a('v_lshlrev_b32 v%d, 4, v%d' % (T + 1, vLANE))
            for i in range(5):
                if i == 4:
                    a('s_add_u32 s%d, s%d, 4096' % (sT0, sT0))
                a('buffer_load_dwordx4 %s, v%d, %s, s%d offen offset:%d sc1' % (
                    vr(vKP + 4 * i), T + 1, sr(SWS, 4), sT0, (1024 * i) % 4096))

        def try_halo():
            Lnp = self.lab('Lnp')
            a('s_mov_b32 s%d, 0' % sM2)
            a('s_cmp_lg_u32 s%d, 0' % sWAVE)
            a('s_cbranch_scc1 %s' % Lnp)
            vm.wait(a, 'PROBE')
            a('v_readfirstlane_b32 s%d, v%d' % (sT0, T + 3))
            a('s_cmp_lg_u32 s%d, s%d' % (sT0, sNONCE))
            a('s_cbranch_scc1 %s' % Lnp)
            halo_slot()
            halo_loads()
            a('s_mov_b32 s%d, 1' % sM2)
            a.label(Lnp)
            vm.mark('HLD')

        s2 = {}
        self.over(s2, 7, 20, self.group('S', 13))
        self.over(s2, 21, 38, self.group('S', 14))
        self.put(s2, (39,), [('O', 0, 0)])
        for j in range(3):
            self.over(s2, 41 + 20 * j, 59 + 20 * j, self.group('T', j))
        self.put(s2, (70, 79), [probe, try_halo])
        st = self.gemm_pass(a, vm, pipe, 2, s2, extra, st, False)
        self.stamp(a, 'p2')
        Lw0, Lw1, Lz, Lz2, Lgot = [self.lab(x) for x in ('Lw0', 'Lw1', 'Lz', 'Lz2', 'Lgot')]
        a('s_cmp_eq_u32 s%d, 0' % sWAVE)
        a('s_cbranch_scc1 %s' % Lw0)
        a('v_subrev_u32 v%d, 2560, v%d' % (T, vKW))
        for ct in range(5):
            a('ds_read_b64 %s, v%d offset:%d' % (vr(vKP + 2 * ct, 2), T, 512 * ct))
        a('s_branch %s' % Lw1)
        a.label(Lw0)
        a('s_cmp_eq_u32 s%d, 1' % sM2)
        a('s_cbranch_scc1 %s' % Lgot)
        a('s_cmp_eq_u32 s%d, 0' % sRB)
        a('s_cbranch_scc1 %s' % Lz)
        halo_slot()
        a('v_mov_b32 v%d, 0' % T)
        self.poll(a, T, T + 1, 1, 's%d' % sT2)
        halo_loads()
        a('s_waitcnt vmcnt(0)')
        a.label(Lgot)
        vm.wait(a, 'HLD')
        a('s_cmp_lg_u32 s%d, 0' % sRB)
        a('s_cbranch_scc1 %s' % Lz2)
        a.label(Lz)
        for i in range(20):
            a('v_mov_b32 v%d, 0' % (vKP + i))
        for r in range(4):
            a('v_mov_b32 v%d, 0x%x' % (vBP0 + r, NEG))
        a.label(Lz2)
        a('v_add_u32 v%d, %d, v%d' % (T, HALOV, vVW))
        self.v_to_lds(a, vKP + 10, T, 0)
        a('s_waitcnt lgkmcnt(0)')
        a.label(Lw1)
        a('s_barrier')
        for it in self.group('T', 3) + self.group('T', 4):
            self.item(a, vm, it)
        aVO = [0, 20]
        for ct in range(5):
            a('ds_read_b64_tr_b16 %s, v%d offset:%d' % (ar(aVO[0] + 4 * ct, 2), vVP, 32 * ct))
            a('ds_read_b64_tr_b16 %s, v%d offset:%d' % (ar(aVO[0] + 4 * ct + 2, 2), vVC, 32 * ct))
        self.emit(a, both(lambda r, mt: self.pack(r, mt, vQ[mt])))
        for ct in range(5):
            a('ds_read_b64_tr_b16 %s, v%d offset:%d' % (ar(aVO[1] + 4 * ct, 2), vVC, 32 * ct))
            a('ds_read_b64_tr_b16 %s, v%d offset:%d' % (ar(aVO[1] + 4 * ct + 2, 2), vVC, 2560 + 32 * ct))
        vQM = [170, 186]
        vSC = vACC
        vSP = [202, 112]
        vSP = [202, 170 + 32 + 16 + 0] if False else [202, 150 + 0]
        vSP = [202, 120]
        self.emit(a, both(lambda r, mt: self.head_mask(r, vQM[mt], vQ[mt])))
        for mt in range(2):
            for h in range(4):
                a('%s %s, %s, %s, %s' % (MF, vr(vSC[mt] + 4 * h), vr(vK[mt] + 2 * h), vr(vQM[mt] + 4 * h), vr(vBC)))
        for h in range(4):
            a('%s %s, %s, %s, %s' % (MF, vr(vSP[1] + 4 * h), vr(vK[0] + 2 * h), vr(vQM[1] + 4 * h), vr(vBP)))
        a('s_waitcnt lgkmcnt(15)')
        for h in range(4):
            a('%s %s, %s, %s, %s' % (MF, vr(vSP[0] + 4 * h), vr(vKP + 2 * h), vr(vQM[0] + 4 * h), vr(vBP0)))
        a('s_mov_b32 s%d, 0x%x' % (sT0, f2u(SCALE * LOG2E)))

        def soft(a, mt):
            vE, vMX, vZ = vTMP[mt], vTMP[mt] + 8, vTMP[mt] + 12
            vO4 = vACC[mt] + 16
            SC, SP = vSC[mt], vSP[mt]
            for h in range(4):
                for j in range(2):
                    a('v_max3_f32 v%d, v%d, v%d, v%d' % (vE + 2 * h + j, SC + 4 * h + 2 * j, SC + 4 * h + 2 * j + 1, SP + 4 * h + 2 * j))
            for h in range(4):
                for j in range(2):
                    a('v_max_f32 v%d, v%d, v%d' % (vE + 2 * h + j, vE + 2 * h + j, SP + 4 * h + 2 * j + 1))
            for h in range(4):
                a('v_max_f32 v%d, v%d, v%d' % (vMX + h, vE + 2 * h, vE + 2 * h + 1))
            self.reduce4(a, ('v_max_f32', r4(vMX), vZ))
            a('v_mul_f32 v%d, s%d, v%d' % (vZ, sT0, vZ))
            self.bcast4(a, (vZ, r4(vO4)))
            for h in range(4):
                for j in range(2):
                    a('v_fma_f32 v%d, v%d, s%d, -v%d' % (vE + 2 * h + j, vE + 2 * h + j, sT0, vO4 + h))
            for i in range(8):
                a('v_exp_f32 v%d, v%d' % (vE + i, vE + i))
            for h in range(4):
                a('v_add_f32 v%d, v%d, v%d' % (vMX + h, vE + 2 * h, vE + 2 * h + 1))
            self.reduce4(a, ('v_add_f32', r4(vMX), vZ))
            a('v_rcp_f32 v%d, v%d' % (vZ, vZ))
            self.bcast4(a, (vZ, r4(vO4)))
            for h in range(4):
                for j in range(2):
                    a('v_mul_f32 v%d, v%d, v%d' % (vE + 2 * h + j, vE + 2 * h + j, vO4 + h))
            for i in range(8):
                a('v_cvt_pk_bf16_f32 v%d, v%d, v%d' % (vE + i, vE + i, vE + i))
            for h in range(4):
                for j in range(2):
                    a('v_and_b32 v%d, v%d, v%d' % (vQM[mt] + 4 * h + j, vMC + j, vE + 2 * h + j))
                    a('v_and_b32 v%d, v%d, v%d' % (vQM[mt] + 4 * h + 2 + j, vMC + 2 + j, vE + 2 * h + j))

        self.emit(a, both(soft)[1:2] and [y for p in zip(*[self._rec(soft, mt) for mt in (1, 0)]) for y in p])
        a('s_waitcnt lgkmcnt(0)')
        for mt in (1, 0):
            for h in range(4):
                a('%s %s, %s, %s, 0' % (MF, vr(vSC[mt] + 4 * h), ar(aVO[mt] + 4 * h), vr(vQM[mt] + 4 * h)))
                a('%s %s, %s, %s, 0' % (MF, vr(vSP[mt] + 4 * h), ar(aVO[mt] + 4 * h + 4), vr(vQM[mt] + 4 * h)))
        vO = [140, 150]
        self.emit(a, both(lambda r, mt: self.select_pack(r, [vSC[mt] + 4 * h for h in range(4)],
                                                         [vSP[mt] + 4 * h for h in range(4)], vO[mt])))
        self.store_o(a, vO)
        self.phase3(a, R[4])

    def _rec(self, fn, mt):
        r = Rec()
        fn(r, mt)
        return r.lines

    def features_mfma(self, a, DA):
        for mt in range(2):
            for h in range(4):
                a('%s %s, %s, %s, 0' % (MF, vr(DA[mt] + 4 * h), vr(vWA + 4 * h), vr(vK[mt] + 2 * h)))
        for i in range(3):
            for mt in range(2):
                a('%s %s, %s, %s, %s' % (MF, vr(DA[mt] + 16), vr(vWB + 4 * i), vr(vK[mt] + 4 * i), '0' if i == 0 else vr(DA[mt] + 16)))

    def features_valu(self, a, mt):
        DA = EN = vPHI[mt]
        EP = vEP[mt]
        MX, MN, ZX, ZN, BX = vTMP[mt], vTMP[mt] + 5, vTMP[mt] + 10, vTMP[mt] + 11, vTMP[mt] + 12
        BN = vK[mt]
        SC = [vK[mt] + 4, vK[mt] + 6, vK[mt] + 8, BX, BX + 2]
        for h in range(5):
            a('v_max3_f32 v%d, v%d, v%d, v%d' % (MX + h, DA + 4 * h, DA + 4 * h + 1, DA + 4 * h + 2))
            a('v_min3_f32 v%d, v%d, v%d, v%d' % (MN + h, DA + 4 * h, DA + 4 * h + 1, DA + 4 * h + 2))
        for h in range(5):
            a('v_max_f32 v%d, v%d, v%d' % (MX + h, MX + h, DA + 4 * h + 3))
            a('v_min_f32 v%d, v%d, v%d' % (MN + h, MN + h, DA + 4 * h + 3))
        self.reduce4(a, ('v_max_f32', r4(MX), ZX), ('v_min_f32', r4(MN), ZN))
        a('v_max_f32 v%d, v%d, v%d' % (ZX, ZX, MX + 4))
        a('v_min_f32 v%d, v%d, v%d' % (ZN, ZN, MN + 4))
        a('v_mul_f32 v%d, s%d, v%d' % (ZX, sL2E, ZX))
        a('v_mul_f32 v%d, s%d, v%d' % (ZN, sL2E, ZN))
        self.bcast4(a, (ZX, r4(BX)), (ZN, r4(BN)))
        for h in (4, 0, 1, 2, 3):
            mx = BX + h if h < 4 else ZX
            mn = BN + h if h < 4 else ZN
            for r in (0, 2):
                a('v_pk_fma_f32 %s, %s, %s, %s op_sel:[0,0,%d] op_sel_hi:[1,1,%d] neg_lo:[0,0,1] neg_hi:[0,0,1]' % (
                    vr(EP + 4 * h + r, 2), vr(DA + 4 * h + r, 2), sr(sL2E), vr(mx & ~1, 2), mx & 1, mx & 1))
                a('v_pk_fma_f32 %s, %s, %s, %s op_sel:[0,0,%d] op_sel_hi:[1,1,%d] neg_lo:[1,0,0] neg_hi:[1,0,0]' % (
                    vr(EN + 4 * h + r, 2), vr(DA + 4 * h + r, 2), sr(sL2E), vr(mn & ~1, 2), mn & 1, mn & 1))
        for i in range(20):
            a('v_exp_f32 v%d, v%d' % (EP + i, EP + i))
            a('v_exp_f32 v%d, v%d' % (EN + i, EN + i))
        for base, S in ((EP, MX), (EN, MN)):
            for h in range(5):
                a('v_pk_add_f32 %s, %s, %s' % (vr(SC[h], 2), vr(base + 4 * h, 2), vr(base + 4 * h + 2, 2)))
            for h in range(5):
                a('v_add_f32 v%d, v%d, v%d' % (S + h, SC[h], SC[h] + 1))
        self.reduce4(a, ('v_add_f32', r4(MX), ZX), ('v_add_f32', r4(MN), ZN))
        a('v_add_f32 v%d, v%d, v%d' % (ZX, ZX, MX + 4))
        a('v_add_f32 v%d, v%d, v%d' % (ZN, ZN, MN + 4))
        a('v_rcp_f32 v%d, v%d' % (ZX, ZX))
        a('v_rcp_f32 v%d, v%d' % (ZN, ZN))
        self.bcast4(a, (ZX, r4(BX)), (ZN, r4(BN)))
        for h in (4, 0, 1, 2, 3):
            sx = BX + h if h < 4 else ZX
            sn = BN + h if h < 4 else ZN
            for r in (0, 2):
                for E, m in ((EP, sx), (EN, sn)):
                    a('v_pk_mul_f32 %s, %s, %s op_sel:[0,%d] op_sel_hi:[1,%d]' % (
                        vr(E + 4 * h + r, 2), vr(E + 4 * h + r, 2), vr(m & ~1, 2), m & 1, m & 1))
        for h in range(5):
            a('v_cvt_pk_bf16_f32 v%d, v%d, v%d' % (EN + 4 * h + 3, EN + 4 * h + 2, EN + 4 * h + 3))
            a('v_cvt_pk_bf16_f32 v%d, v%d, v%d' % (EN + 4 * h + 2, EN + 4 * h, EN + 4 * h + 1))
            a('v_cvt_pk_bf16_f32 v%d, v%d, v%d' % (EN + 4 * h, EP + 4 * h, EP + 4 * h + 1))
            a('v_cvt_pk_bf16_f32 v%d, v%d, v%d' % (EN + 4 * h + 1, EP + 4 * h + 2, EP + 4 * h + 3))

    def branch_b(self, a, vm):
        pipe = Pipe(self, a)
        vVW, vPB, vRA, vRB, vRV = (vMISC + x for x in range(5))
        vSO = vMISC + 5
        vGA, vGL = vMISC + 12, vMISC + 16
        vFA = vMISC + 20
        vPOS, vG, vTRS = vMISC + 32, vMISC + 33, vMISC + 34
        T = vTMP[0]
        sH = sWAVE
        self.lane_common(a, vPOS, vG, vVW, vTRS)
        a('v_add_u32 v%d, s%d, v%d' % (vVW, sWL, vVW))
        a('v_mul_u32_u24 v%d, 160, v%d' % (vPB, vPOS))
        a('v_and_b32 v%d, 1, v%d' % (T, vG))
        a('v_mul_u32_u24 v%d, 80, v%d' % (T, T))
        a('v_add3_u32 v%d, v%d, v%d, s%d' % (vPB, vPB, T, sWL))
        a('v_mov_b32 v%d, %d' % (T, PHI0 + 64))
        a('v_mov_b32 v%d, %d' % (T + 1, PHI1 + 64))
        a('v_cndmask_b32_e64 v%d, v%d, v%d, %s' % (T + 2, T, T + 1, sr(sGE + 2)))
        a('v_add_u32 v%d, v%d, v%d' % (vPB, vPB, T + 2))
        a('s_mov_b32 s%d, %d' % (sT0, PHI0))
        a('s_cmp_ge_u32 s%d, 2' % sH)
        a('s_cselect_b32 s%d, %d, s%d' % (sT0, PHI1, sT0))
        a('s_and_b32 s%d, s%d, 1' % (sT1, sH))
        a('s_mul_i32 s%d, s%d, 80' % (sT1, sT1))
        a('s_add_u32 s%d, s%d, s%d' % (sT0, sT0, sT1))
        a('v_add_u32 v%d, s%d, v%d' % (vRA, sT0, vTRS))
        a('v_lshrrev_b32 v%d, 2, v%d' % (vRB, vLANE))
        a('v_mul_u32_u24 v%d, 160, v%d' % (vRB, vRB))
        a('v_and_b32 v%d, 1, v%d' % (T + 2, vLANE))
        a('v_mul_u32_u24 v%d, 80, v%d' % (T + 2, T + 2))
        a('v_add_u32 v%d, v%d, v%d' % (vRB, vRB, T + 2))
        a('v_and_b32 v%d, 2, v%d' % (T + 2, vLANE))
        a('v_cmp_eq_u32 vcc, 0, v%d' % (T + 2))
        a('v_cndmask_b32 v%d, v%d, v%d, vcc' % (T + 2, T + 1, T))
        a('v_add_u32 v%d, v%d, v%d' % (vRB, vRB, T + 2))
        a('s_lshl_b32 s%d, s%d, 5' % (sT1, sH))
        a('s_add_u32 s%d, s%d, %d' % (sT1, sT1, VBUF))
        a('v_add_u32 v%d, s%d, v%d' % (vRV, sT1, vTRS))
        BAD = 0x7ffffff0
        a('v_mov_b32 v%d, 0x%x' % (T + 4, BAD))
        a('v_lshlrev_b32 v%d, 2, v%d' % (T + 5, vG))
        a('v_lshl_add_u32 v%d, v%d, 4, v%d' % (T + 5, vPOS, T + 5))
        a('s_lshl_b32 s%d, s%d, 2' % (sT0, sH))
        a('s_lshl_b32 s%d, s%d, 10' % (sT1, sH))
        a('v_add_u32 v%d, s%d, v%d' % (T, sT1, T + 5))
        a('v_cmp_le_u32 %s, s%d, v%d' % (sr(sM), sT0, vPOS))
        a('v_cndmask_b32_e64 v%d, v%d, v%d, %s' % (vSO, T + 4, T, sr(sM)))
        a('v_add_u32 v%d, 1024, v%d' % (T, T))
        a('s_add_u32 s%d, s%d, 4' % (sT0, sT0))
        a('v_cmp_gt_u32 vcc, s%d, v%d' % (sT0, vPOS))
        a('v_cndmask_b32 v%d, v%d, v%d, vcc' % (vSO + 1, T + 4, T))
        a('v_lshlrev_b32 v%d, 2, v%d' % (T + 6, vPOS))
        a('v_lshl_add_u32 v%d, v%d, 4, v%d' % (T + 6, vG, T + 6))
        a('s_lshl_b32 s%d, s%d, 6' % (sT1, sH))
        a('s_add_u32 s%d, s%d, %d' % (sT1, sT1, REC_ZA))
        a('v_add_u32 v%d, s%d, v%d' % (T, sT1, T + 6))
        a('v_cmp_gt_u32 %s, 4, v%d' % (sr(sM2), vPOS))
        a('v_cndmask_b32_e64 v%d, v%d, v%d, %s' % (vSO + 2, T + 4, T, sr(sM2)))
        a('v_mov_b32 v%d, s%d' % (T + 1, sH))
        a('v_subrev_u32 v%d, 1, v%d' % (T + 2, T + 1))
        a('v_cndmask_b32_e64 v%d, v%d, v%d, %s' % (T + 1, T + 2, T + 1, sr(sM)))
        a('v_cmp_eq_u32 vcc, v%d, v%d' % (T + 1, vG))
        a('v_cndmask_b32_e64 v%d, 0, -1, vcc' % (vSO + 5))
        a('s_lshl_b32 s%d, s%d, 8' % (sT0, sH))
        a('s_add_u32 s%d, s%d, %d' % (sT0, sT0, REC_KVB))
        a('v_add_u32 v%d, s%d, v%d' % (vSO + 3, sT0, T + 5))
        a('s_cmp_eq_u32 s%d, 3' % sH)
        a('s_cselect_b64 %s, -1, 0' % sr(sHM))
        a('v_add_u32 v%d, %d, v%d' % (T, REC_KVB + 1024, T + 5))
        a('v_add_u32 v%d, %d, v%d' % (T + 1, REC_ZB, T + 5))
        a('v_cndmask_b32_e64 v%d, v%d, v%d, %s' % (T + 1, T + 4, T + 1, sr(sM2)))
        a('s_cmp_eq_u32 s%d, 0' % sH)
        a('s_cselect_b64 %s, -1, 0' % sr(sM))
        a('v_cndmask_b32_e64 v%d, v%d, v%d, %s' % (T + 1, T + 4, T + 1, sr(sM)))
        a('v_cndmask_b32_e64 v%d, v%d, v%d, %s' % (vSO + 4, T + 1, T, sr(sHM)))
        a('v_mov_b32 v%d, 3' % T)
        a('v_cndmask_b32_e64 v%d, v%d, v%d, %s' % (T, vPOS, T, sr(sHM)))
        a('v_cmp_eq_u32 vcc, v%d, v%d' % (T, vG))
        a('v_cndmask_b32_e64 v%d, 0, -1, vcc' % (vSO + 6))
        for i in range(4):
            U = T
            a('s_lshl_b32 s%d, s%d, 6' % (sT0, sWAVE))
            a('s_add_u32 s%d, s%d, %d' % (sT0, sT0, 256 * i))
            a('v_add_u32 v%d, s%d, v%d' % (U, sT0, vLANE))
            a('v_lshlrev_b32 v%d, 4, v%d' % (vGA + i, U))
            a('v_mov_b32 v%d, 0' % (U + 2))
            a('v_mov_b32 v%d, 320' % (U + 3))
            a('v_mov_b32 v%d, %d' % (U + 5, KVOP))
            for st, cnt, lb in ((640, 80, OP_KVB), (800, 16, OP_ZA), (832, 4, OP_ZB)):
                if 256 * i + 255 < st:
                    continue
                a('v_cmp_le_u32 vcc, %d, v%d' % (st, U))
                a('v_mov_b32 v%d, %d' % (U + 6, st))
                a('v_cndmask_b32 v%d, v%d, v%d, vcc' % (U + 2, U + 2, U + 6))
                a('v_mov_b32 v%d, %d' % (U + 6, cnt))
                a('v_cndmask_b32 v%d, v%d, v%d, vcc' % (U + 3, U + 3, U + 6))
                a('v_mov_b32 v%d, %d' % (U + 6, KVOP + lb))
                a('v_cndmask_b32 v%d, v%d, v%d, vcc' % (U + 5, U + 5, U + 6))
            a('v_sub_u32 v%d, v%d, v%d' % (U + 2, U, U + 2))
            a('v_cmp_ge_u32 vcc, v%d, v%d' % (U + 2, U + 3))
            a('v_sub_u32 v%d, v%d, v%d' % (U + 6, U + 2, U + 3))
            a('v_cndmask_b32 v%d, v%d, v%d, vcc' % (U + 2, U + 2, U + 6))
            a('v_lshl_add_u32 v%d, v%d, 4, v%d' % (U + 5, U + 2, U + 5))
            a('v_add_u32 v%d, 8, v%d' % (U + 6, U + 5))
            a('v_cndmask_b32 v%d, v%d, v%d, vcc' % (vGL + i, U + 5, U + 6))
            if i == 3:
                a('v_cmp_gt_u32 vcc, 840, v%d' % U)
                a('v_cndmask_b32 v%d, v%d, v%d, vcc' % (vGA + i, T + 4, vGA + i))
                a('v_and_b32 v%d, 1, v%d' % (U + 5, U))
                a('v_lshlrev_b32 v%d, 3, v%d' % (U + 5, U + 5))
                a('v_add_u32 v%d, %d, v%d' % (U + 5, KVOP + OP_ZERO, U + 5))
                a('v_cndmask_b32 v%d, v%d, v%d, vcc' % (vGL + i, U + 5, vGL + i))
        a('v_lshlrev_b32 v%d, 4, v%d' % (vFA, vLANE))
        a('v_add_u32 v%d, %d, v%d' % (vFA, KVOP, vFA))
        a('v_lshlrev_b32 v%d, 4, v%d' % (vFA + 1, vG))
        a('v_add_u32 v%d, %d, v%d' % (vFA + 1, KVOP, vFA + 1))
        a('v_lshlrev_b32 v%d, 4, v%d' % (T + 2, vPOS))
        a('v_mov_b32 v%d, %d' % (T + 4, KVOP + OP_ZERO))
        for ct in range(5):
            m = 0
            for l in range(64):
                if (16 * ct + (l & 15)) // 20 == (l >> 4):
                    m |= 1 << l
            self.mask(a, sM, m)
            a('v_add_u32 v%d, %d, v%d' % (T + 3, KVOP + OP_KVB + 256 * ct, T + 2))
            a('v_cndmask_b32_e64 v%d, v%d, v%d, %s' % (vFA + 2 + ct, T + 4, T + 3, sr(sM)))
        for h in range(4):
            self.mask(a, sM, 0xffff << (16 * h))
            a('v_mov_b32 v%d, %d' % (T + 3, KVOP + OP_ZB + 16 * h))
            a('v_cndmask_b32_e64 v%d, v%d, v%d, %s' % (vFA + 7 + h, T + 4, T + 3, sr(sM)))
        self.second_group(a, vm)

        UA, UB = vPHI[0], vPHI[0] + 10

        def wphi_read():
            A = T
            a('v_lshrrev_b32 v%d, 2, v%d' % (A, vLANE))
            a('v_mul_u32_u24 v%d, 40, v%d' % (A, A))
            a('v_add_u32 v%d, %d, v%d' % (A, WPHI, A))
            a('v_and_b32 v%d, 3, v%d' % (A + 1, vLANE))
            a('v_lshl_add_u32 v%d, v%d, 3, v%d' % (A + 1, A + 1, A))
            for ct in range(5):
                a('ds_read_b64_tr_b16 %s, v%d offset:%d' % (vr(UA + 2 * ct, 2), A + 1, 640 * ct))
                a('ds_read_b64_tr_b16 %s, v%d offset:%d' % (vr(UB + 2 * ct, 2), A, 640 * ct + 32))
            pipe.extra('WP', 10)

        wm = Rec()
        self.head_mask(wm, vWA, UA)
        for ct in range(5):
            m = 0
            for l in range(64):
                g, i = l >> 4, l & 15
                if (i >> 2) == (ct if g >= ct else ct - 1):
                    m |= 1 << l
            self.mask(wm, sM, m)
            for i in range(2):
                wm('v_cndmask_b32_e64 v%d, 0, v%d, %s' % (vWB + 2 * ct + i, UB + 2 * ct + i, sr(sM)))
        for x in (vWB + 10, vWB + 11, vK[0] + 10, vK[0] + 11, vK[1] + 10, vK[1] + 11):
            wm('v_mov_b32 v%d, 0' % x)

        def flag(base):
            def f():
                a('s_lshl_b32 s%d, s%d, 4' % (sT1, sHG))
                a('s_add_u32 s%d, s%d, s%d' % (sT1, sT1, sRB))
                a('s_lshl_b32 s%d, s%d, 7' % (sT1, sT1))
                a('s_add_u32 s%d, s%d, %d' % (sT1, sT1, base))
                self.set_flag(a, sT1)
            return f

        def zero_store():
            L = self.lab('Lzs')
            Z = vEP[1]
            a('s_cmp_lg_u32 s%d, 1' % sWAVE)
            a('s_cbranch_scc1 %s' % L)
            a('s_mul_i32 s%d, s%d, 840' % (sT0, sRB))
            a('s_and_b32 s%d, s%d, -16' % (sT0, sT0))
            a('s_mul_i32 s%d, s%d, %d' % (sT1, sHG, KVP_REC))
            a('s_add_u32 s%d, s%d, s%d' % (sT0, sT0, sT1))
            a('s_add_u32 s%d, s%d, %d' % (sT0, sT0, WS_KVP))
            for i in range(4):
                a('v_mov_b32 v%d, 0' % (Z + i))
            a('v_lshlrev_b32 v%d, 4, v%d' % (Z + 4, vLANE))
            a('s_mov_b32 exec_hi, 0x3fffff')
            a('buffer_store_dwordx4 %s, v%d, %s, s%d offen sc1' % (vr(Z), Z + 4, sr(SWS, 4), sT0))
            a('s_mov_b32 exec_hi, -1')
            a.label(L)
            vm.mark('ZST')

        def probe(base, tag):
            def f():
                a('s_lshl_b32 s%d, s%d, 11' % (sT4, sHG))
                a('s_add_u32 s%d, s%d, %d' % (sT4, sT4, base))
                a('v_and_b32 v%d, 15, v%d' % (vXT, vLANE))
                a('v_lshlrev_b32 v%d, 7, v%d' % (vXT, vXT))
                a('buffer_load_dword v%d, v%d, %s, s%d offen sc1' % (vXO, vXT, sr(SWS, 4), sT4))
                vm.add(tag)
            return f

        def poll16(base):
            a('s_lshl_b32 s%d, s%d, 11' % (sT3, sHG))
            a('s_add_u32 s%d, s%d, %d' % (sT3, sT3, base))
            a('v_lshlrev_b32 v%d, 7, v%d' % (vXT, vLANE))
            self.poll(a, vXT, vXT + 1, 0xffff, 's%d' % sT3)

        fs = self.opt.get('flagstage', 13)
        extra = {('wait', 3): ['WPHI'], ('post', 3): [wphi_read], ('wait', fs): ['KVST'], ('post', fs): [flag(WS_FLAG + 128 * 128)],
                 ('wait', 6): ['ZST'], ('post', 6): [flag(WS_FLAG + 512 * 128)]}
        s0 = self.sched0(a, vm, pipe, extra, 1)
        self.put(s0, (66,), [lambda: pipe.need('WP')])
        self.spread(a, s0, wm.lines, 67, 79)
        self.put(s0, (99,), [zero_store])
        st = self.gemm_pass(a, vm, pipe, 0, s0, extra, 0, True)
        self.stamp(a, 'p0')
        self.emit(a, both(lambda r, mt: self.pack(r, mt, vK[mt])))
        self.features_mfma(a, vPHI)
        fk = both(self.features_valu)
        its = self.group('S', 8) + self.group('S', 9) + [('P', 0, 0)]
        body, tail = fk[:-40], fk[-40:]
        for k, x in enumerate(body):
            if k % 30 == 10 and its:
                self.item(a, vm, its.pop(0))
            a(x)
        assert not its
        PWA = vXT
        a('v_add_u32 v%d, %d, v%d' % (PWA, PHI0, vVW))
        a('v_add_u32 v%d, %d, v%d' % (PWA + 1, PHI1, vVW))
        a('v_add_u32 v%d, 2560, v%d' % (PWA + 2, PWA))
        a('v_add_u32 v%d, 2560, v%d' % (T, PWA + 1))
        for h in range(5):
            self.emit(a, tail[8 * h:8 * h + 8])
            for mt in range(2):
                if h < 4:
                    o = (h & 1) * 10
                    a('ds_write2_b64 v%d, %s, %s offset0:%d offset1:%d' % (
                        ((PWA, PWA + 1), (PWA + 2, T))[mt][h >> 1], vr(vPHI[mt] + 4 * h, 2), vr(vPHI[mt] + 4 * h + 2, 2), o, o + 4))
                else:
                    a('ds_write_b128 v%d, %s offset:%d' % (vPB, vr(vPHI[mt] + 16), 2560 * mt))
        pipe.extra('PW', 10)
        self.stamp(a, 'fk')
        s1 = {}
        for u in range(1, 5):
            self.over(s1, 20 * u + 1, 20 * u + 19, self.group('S', 9 + u))
        self.put(s1, (80,), [probe(WS_FLAG + 512 * 128, 'ZPROBE')])
        st = self.gemm_pass(a, vm, pipe, 1, s1, extra, st, True)
        self.stamp(a, 'p1')
        self.emit(a, both(lambda r, mt: self.pack(r, mt, vK[mt])))
        a('v_add_u32 v%d, %d, v%d' % (T, VBUF, vVW))
        for mt in range(2):
            self.v_to_lds(a, vK[mt], T, 2560 * mt)
        ONE = vEP[1] + 16
        for i in range(4):
            a('v_mov_b32 v%d, 0x3f803f80' % (ONE + i))
        a('s_waitcnt lgkmcnt(0)')
        pipe.drained()
        a('s_barrier')
        self.stamp(a, 'e3')
        KA = [[vACC[sg] + 4 * i for i in range(5)] for sg in range(2)]
        BUF = [vPHI[0], vEP[0] - 12 + 0]
        BUF = [140, 164]
        YX = 188

        def kv_reads(B, o):
            for dst, v, off in ((B, vRA, 0), (B + 2, vRA, 2560), (B + 16, vRV, 0), (B + 18, vRV, 2560), (B + 20, vRV, 32),
                                (B + 22, vRV, 2592), (B + 4, vRA, 32), (B + 6, vRA, 2592), (B + 8, vRB, 0), (B + 10, vRB, 2560),
                                (B + 12, vRB, 8), (B + 14, vRB, 2568)):
                a('ds_read_b64_tr_b16 %s, v%d offset:%d' % (vr(dst, 2), v, o + off))

        kv_reads(BUF[0], 0)
        late = self.group('S', 14)
        self.item(a, vm, late[0])
        kv_reads(BUF[1], 5120)
        for ks in range(4):
            B = BUF[ks % 2]
            Y = YX + 4 * (ks % 2)
            a('s_waitcnt lgkmcnt(%d)' % (12 if ks < 3 else 0))
            for i in range(4):
                a('v_cndmask_b32_e64 v%d, v%d, v%d, %s' % (Y + i, ONE + i, B + 20 + i, sr(sHM)))
            for sg in range(2):
                c = lambda i: '0' if ks == 0 else vr(KA[sg][i])
                for i, (x, y) in enumerate(((B + 4 * sg, B + 16), (B + 4 * sg, B + 20), (B + 4 * sg, ONE),
                                            (B + 8 + 4 * sg, B + 16), (B + 8 + 4 * sg, Y))):
                    a('%s %s, %s, %s, %s' % (MF, vr(KA[sg][i]), vr(x), vr(y), c(i)))
                if sg == 0:
                    self.item(a, vm, late[1 + ks])
            if ks + 2 < 4:
                kv_reads(B, (ks + 2) * 5120)
        self.stamp(a, 'e4')
        Lz = self.lab('Lzok')
        vm.wait(a, 'ZPROBE')
        a('v_cmp_ne_u32 vcc, s%d, v%d' % (sNONCE, vXO))
        a('s_cbranch_vccz %s' % Lz)
        poll16(WS_FLAG + 512 * 128)
        a.label(Lz)
        a('s_mul_i32 s%d, s%d, %d' % (sT0, sHG, KVP_REC))
        a('s_add_u32 s%d, s%d, %d' % (sT0, sT0, WS_KVP))
        a('s_add_u32 s%d, s%d, 5120' % (sT1, sT0))
        a('v_cmp_ne_u32 %s, 0, v%d' % (sr(sM), vSO + 5))
        a('v_cmp_ne_u32 %s, 0, v%d' % (sr(sM2), vSO + 6))
        quads = [KA[sg][t] for sg in range(2) for t in range(2)]
        for m in quads:
            a('v_permlane32_swap_b32 v%d, v%d' % (m, m + 2))
            a('v_permlane32_swap_b32 v%d, v%d' % (m + 1, m + 3))
        for m in quads:
            a('v_permlane16_swap_b32 v%d, v%d' % (m, m + 1))
            a('v_permlane16_swap_b32 v%d, v%d' % (m + 2, m + 3))
        for sg in range(2):
            for t in range(2):
                for i in range(4):
                    a('buffer_atomic_add_f32 v%d, v%d, %s, s%d offen offset:%d' % (
                        KA[sg][t] + i, vSO + t, sr(SWS, 4), (sT0, sT1)[sg], 256 * i))
                for r in range(4):
                    a('v_cndmask_b32_e64 v%d, 0, v%d, %s' % (KA[sg][3 + t] + r, KA[sg][3 + t] + r, sr((sM, sM2)[t])))
        self.reduce4(a, *[('v_add_f32', r4(KA[sg][t]), KA[sg][t]) for sg in range(2) for t in (3, 4)])
        for r in (1, 2, 3):
            self.mask(a, sM, 0x1111111111111111 << r)
            for sg in range(2):
                z = KA[sg][2]
                a('v_cndmask_b32_e64 v%d, v%d, v%d, %s' % (z, z, z + r, sr(sM)))
        a('s_cmp_eq_u32 s%d, 3' % sH)
        a('s_cselect_b32 s%d, 1280, 64' % sT1)
        a('s_add_u32 s%d, s%d, s%d' % (sT1, sT1, sT0))
        for sg in range(2):
            a('buffer_atomic_add_f32 v%d, v%d, %s, s%d offen offset:%d' % (KA[sg][2], vSO + 2, sr(SWS, 4), sT0, 256 * sg))
            a('buffer_atomic_add_f32 v%d, v%d, %s, s%d offen offset:%d' % (KA[sg][3], vSO + 3, sr(SWS, 4), sT0, 1280 * sg))
            a('buffer_atomic_add_f32 v%d, v%d, %s, s%d offen' % (KA[sg][4], vSO + 4, sr(SWS, 4), (sT0, sT1)[sg]))
        vm.add('KVST', 22)
        self.stamp(a, 'kv')
        s2 = {}
        self.put(s2, (10,), [('O', 0, 0)])
        self.over(s2, 24, 60, self.group('T', 0) + self.group('T', 1) + self.group('T', 2))
        self.over(s2, 62, 78, self.group('T', 3))
        self.over(s2, 81, 92, self.group('T', 4))
        self.put(s2, (93,), [probe(WS_FLAG + 128 * 128, 'PROBE')])
        st = self.gemm_pass(a, vm, pipe, 2, s2, extra, st, False)
        self.stamp(a, 'p2')
        GR = [vACC[0], vACC[0] + 4, vACC[0] + 8, vACC[0] + 12]

        def gather():
            a('s_mul_i32 s%d, s%d, %d' % (sT0, sHG, KVP_REC))
            a('s_add_u32 s%d, s%d, %d' % (sT0, sT0, WS_KVP))
            for i in range(4):
                a('buffer_load_dwordx4 %s, v%d, %s, s%d offen sc1' % (vr(GR[i]), vGA + i, sr(SWS, 4), sT0))

        Lno, Lj = self.lab('Lno'), self.lab('Lj')
        self.emit(a, both(lambda r, mt: self.pack(r, mt, vK[mt])))
        self.features_mfma(a, vPHI)
        a('s_mov_b32 s%d, 0' % sM2)
        vm.wait(a, 'PROBE')
        a('v_cmp_ne_u32 vcc, s%d, v%d' % (sNONCE, vXO))
        a('s_cbranch_vccnz %s' % Lno)
        gather()
        a('s_mov_b32 s%d, 1' % sM2)
        a.label(Lno)
        self.stamp(a, 'g0')
        fq = both(self.features_valu)
        half = len(fq) // 2
        self.emit(a, fq[:half])
        Lh2 = self.lab('Lh2')
        a('s_cmp_eq_u32 s%d, 1' % sM2)
        a('s_cbranch_scc1 %s' % Lh2)
        poll16(WS_FLAG + 128 * 128)
        gather()
        a.label(Lh2)
        self.emit(a, fq[half:-40])
        a('s_waitcnt vmcnt(0)')
        for i in range(4):
            a('v_cvt_pk_bf16_f32 v%d, v%d, v%d' % (GR[i], GR[i], GR[i] + 1))
            a('v_cvt_pk_bf16_f32 v%d, v%d, v%d' % (GR[i] + 1, GR[i] + 2, GR[i] + 3))
            a('ds_write_b64 v%d, %s' % (vGL + i, vr(GR[i], 2)))
        self.emit(a, fq[-40:-20])
        a('s_waitcnt lgkmcnt(0)')
        a('s_barrier')
        self.stamp(a, 'g1')
        KVA, KVB, ZA, ZB = 0, 20, 40, 56
        for ct in range(5):
            a('ds_read_b128 %s, v%d' % (ar(KVB + 4 * ct), vFA + 2 + ct))
        for h in range(4):
            a('ds_read_b128 %s, v%d offset:%d' % (ar(ZA + 4 * h), vFA + 1, OP_ZA + 64 * h))
        for h in range(4):
            a('ds_read_b128 %s, v%d' % (ar(ZB + 4 * h), vFA + 7 + h))
        for ct in range(5):
            a('ds_read_b128 %s, v%d offset:%d' % (ar(KVA + 4 * ct), vFA, 1024 * ct))
        self.emit(a, fq[-20:])
        self.stamp(a, 'fq')
        NB = [vEP[0], vEP[1]]
        DEN = [vTMP[0], vTMP[1]]
        lo = [[vACC[mt] + 4 * h for h in range(4)] for mt in range(2)]
        hi = [[(vWA, vK[0])[mt] + 4 * h for h in range(4)] for mt in range(2)]
        a('s_waitcnt lgkmcnt(13)')
        for mt in range(2):
            for ct in range(5):
                a('%s %s, %s, %s, 0' % (MF, vr(NB[mt] + 4 * ct), ar(KVB + 4 * ct), vr(vPHI[mt] + 16)))
        a('s_waitcnt lgkmcnt(9)')
        for mt in range(2):
            for h in range(4):
                a('%s %s, %s, %s, 0' % (MF, vr(DEN[mt] + 4 * h), ar(ZA + 4 * h), vr(vPHI[mt] + 4 * h)))
        a('s_waitcnt lgkmcnt(5)')
        for mt in range(2):
            for h in range(4):
                a('%s %s, %s, %s, %s' % (MF, vr(DEN[mt] + 4 * h), ar(ZB + 4 * h), vr(vPHI[mt] + 16), vr(DEN[mt] + 4 * h)))
        a('s_waitcnt lgkmcnt(0)')
        for mt in range(2):
            for h in range(4):
                a('%s %s, %s, %s, %s' % (MF, vr(lo[mt][h]), ar(KVA + 4 * h), vr(vPHI[mt] + 4 * h), vr(NB[mt] + 4 * h)))
                a('%s %s, %s, %s, %s' % (MF, vr(hi[mt][h]), ar(KVA + 4 * h + 4), vr(vPHI[mt] + 4 * h), vr(NB[mt] + 4 * h + 4)))
            if mt == 0:
                for m2 in range(2):
                    for h in range(4):
                        a('v_add_f32 v%d, 0x%x, v%d' % (DEN[m2] + 4 * h, f2u(1e-6), DEN[m2] + 4 * h))
                for m2 in range(2):
                    for h in range(4):
                        a('v_rcp_f32 v%d, v%d' % (DEN[m2] + 4 * h, DEN[m2] + 4 * h))
        vO = [128, 104]
        for mt in range(2):
            for h in range(4):
                for acc in (lo[mt][h], hi[mt][h]):
                    for r in (0, 2):
                        a('v_pk_mul_f32 %s, %s, %s op_sel:[0,0] op_sel_hi:[1,0]' % (
                            vr(acc + r, 2), vr(acc + r, 2), vr(DEN[mt] + 4 * h, 2)))
        vO = [vPHI[0], vPHI[1]]
        self.emit(a, both(lambda r, mt: self.select_pack(r, lo[mt], hi[mt], vO[mt])))
        self.store_o(a, vO)
        self.phase3(a, R[4])

    def phase3(self, a, stage):
        vm = VM()
        pipe = Pipe(self, a)
        self.stamp(a, 'o')
        T = vTMP[0]
        vOO = vMISC
        for i in range(5):
            a('v_add_u32 v%d, %d, v%d' % (T, 64 * i, vLANE))
            self.div10(a, T, T + 1, T + 2)
            a('v_mul_u32_u24 v%d, 2560, v%d' % (T + 1, T + 1))
            a('v_lshl_add_u32 v%d, v%d, 4, v%d' % (vOO + i, T + 2, T + 1))
        vA16, vA8, vB16, vB8, vSW, vSR = (vMISC + 6 + x for x in range(6))
        a('v_lshlrev_b32 v%d, 4, v%d' % (vA16, vLANE))
        a('v_lshlrev_b32 v%d, 3, v%d' % (vA8, vLANE))
        a('v_add_u32 v%d, 2560, v%d' % (vB16, vA16))
        a('v_add_u32 v%d, 2560, v%d' % (vB8, vA8))
        a('v_and_b32 v%d, 15, v%d' % (T, vLANE))
        a('v_mul_u32_u24 v%d, 160, v%d' % (T, T))
        a('v_lshrrev_b32 v%d, 4, v%d' % (T + 1, vLANE))
        a('v_lshl_add_u32 v%d, v%d, 3, v%d' % (T, T + 1, T))
        a('s_add_u32 s%d, s%d, %d' % (sT0, sWL, stage))
        a('v_add_u32 v%d, s%d, v%d' % (vSW, sT0, T))
        a('v_add_u32 v%d, s%d, v%d' % (vSR, sT0, vA16))
        a('s_lshl_b32 s%d, s%d, 4' % (sT2, sBR))
        a('s_add_u32 s%d, s%d, s%d' % (sT2, sT2, sRB))
        a('s_lshl_b32 s%d, s%d, 10' % (sT2, sT2))
        a('s_add_u32 s%d, s%d, %d' % (sT2, sT2, WS_FLAG + 256 * 128))
        a('s_lshl_b32 s%d, s%d, 7' % (sT1, sHG))
        a('s_add_u32 s%d, s%d, s%d' % (sT1, sT1, sT2))
        self.o_base(a)
        a('s_mov_b32 s%d, s%d' % (sXO, sT0))
        a('s_add_u32 s%d, s%d, 20480' % (sXO + 1, sT0))
        a('s_waitcnt vmcnt(0)')
        self.stamp(a, 'od')
        a('s_barrier')
        self.set_flag(a, sT1)
        row = lambda r: R[self.tmap[r // 128]] + (r % 128) * 160
        frags = []
        pre = {}
        for P in range(4):
            steps = [(160 * P, 160 * P + 16), (160 * P + 32, 160 * P + 48), (160 * P + 80, 160 * P + 96),
                     (160 * P + 112, 160 * P + 128), (160 * P + 64, 160 * P + 144)]
            for si, (r0, r1) in enumerate(steps):
                pre[min(len(frags) + D, 99)] = [lambda t='O%d%d' % (P, si): vm.wait(a, t)]
                for ct in range(5):
                    frags.append((row(r0) + 32 * ct, row(r1) + 32 * ct, aX + 40 * P + 4 * si, aX + 40 * P + 20 + 4 * si,
                                  ct, P == 0 and si == 0))
        for f in frags[:D]:
            pipe.read(f)
        a('v_lshlrev_b32 v%d, 7, v%d' % (T, vLANE))
        self.poll(a, T, T + 1, 0xff, 's%d' % sT2)
        self.stamp(a, 'of')
        post = {}

        items = []
        for P in range(4):
            for si, (va, off) in enumerate(((vA16, 0), (vA16, 1024), (vB16, 0), (vB16, 1024), (None, 2048))):
                for mt in range(2):
                    def f(P=P, si=si, va=va, off=off, mt=mt):
                        b = aX + 40 * P + 20 * mt + 4 * si
                        if si < 4:
                            a('buffer_load_dwordx4 %s, v%d, %s, s%d offen offset:%d sc1' % (ar(b), va, sr(SWS, 4), sXO + mt, off))
                            vm.add('O%d%d' % (P, si))
                        else:
                            a('buffer_load_dwordx2 %s, v%d, %s, s%d offen offset:2048 sc1' % (ar(b, 2), vA8, sr(SWS, 4), sXO + mt))
                            a('buffer_load_dwordx2 %s, v%d, %s, s%d offen offset:2048 sc1' % (ar(b + 2, 2), vB8, sr(SWS, 4), sXO + mt))
                            vm.add('O%d%d' % (P, si), 2)
                            if P < 3:
                                a('s_add_u32 s%d, s%d, 5120' % (sXO + mt, sXO + mt))
                    items.append(f)
        nfirst = self.opt.get('o_first', 10)
        for f in items[:nfirst]:
            f()
        step = self.opt.get('o_step', 2)
        for k, f in enumerate(items[nfirst:]):
            post.setdefault(D + step * k, []).append(f)
        pipe.run(frags, pre, post, start=D)
        self.stamp(a, 'm3')
        self.emit(a, both(lambda r, mt: self.pack(r, mt, vK[mt])))
        for mt in range(2):
            self.v_to_lds(a, vK[mt], vSW, 2560 * mt)
        a('s_lshl_b32 s%d, s%d, 2' % (sT0, sRB))
        a('s_add_u32 s%d, s%d, s%d' % (sT0, sT0, sWAVE))
        a('s_mul_i32 s%d, s%d, %d' % (sT0, sT0, 32 * 2560))
        a('s_mul_i32 s%d, s%d, 1280' % (sT1, sBR))
        a('s_add_u32 s%d, s%d, s%d' % (sT0, sT0, sT1))
        a('s_mul_i32 s%d, s%d, 160' % (sT1, sHG))
        a('s_add_u32 s%d, s%d, s%d' % (sT0, sT0, sT1))
        a('s_waitcnt lgkmcnt(0)')
        for i in range(5):
            a('ds_read_b128 %s, v%d offset:%d' % (vr(vACC[0] + 4 * i), vSR, 1024 * i))
        for i in range(5):
            a('s_waitcnt lgkmcnt(%d)' % (4 - i))
            a('buffer_store_dwordx4 %s, v%d, %s, s%d offen' % (vr(vACC[0] + 4 * i), vOO + i, sr(SOUT, 4), sT0))
        if self.stamps:
            a('s_waitcnt vmcnt(0)')
            self.stamp(a, 'end')
            self.stamp_out(a)
        if self.opt.get('diag_hold'):
            L = self.lab('Lhold')
            a('s_waitcnt vmcnt(0)')
            a.label(L)
            a('s_memrealtime s[70:71]')
            a('s_waitcnt lgkmcnt(0)')
            a('s_sub_u32 s70, s70, s%d' % sNONCE)
            a('s_cmp_lt_u32 s70, %d' % self.opt['diag_hold'])
            a('s_cbranch_scc1 %s' % L)


def build(path, stamps=False, opt=None):
    g = Gen(stamps, opt)
    hdr = open('cdna_kernels/%s.s.ref' % NAME).read().split('; Override')[0]
    kn = NAME + '_kernel'
    txt = hdr
    txt += '; @launch grid=(256,1,1) block=(256,1,1) lds=%d\n' % LDS_BYTES
    txt += HEADER_FMT + kernel_open(kn) + g.kernel() + kernel_desc(kn, 448, 256)
    open(path, 'w').write(txt)


ST1 = ['start', 'b0', 'p0', 'p1', 'kv', 'p2', 'fq', 'o', 'of', 'm3', 'end']
ST2 = ['start', 'i0', 'i1', 'x0', 'b0', 'b1', 'b2', 'b3', 'b4', 'b5', 'p0']
ST3 = ['start', 'p0', 'fk', 'b6', 'b7', 'b8', 'b9', 'p1', 'e3', 'e4', 'kv']
ST4 = ['start', 'kv', 'b12', 'b14', 'p2', 'g0', 'g1', 'fq', 'o', 'od', 'of']

if __name__ == '__main__':
    opt = json.loads(sys.argv[1]) if len(sys.argv) > 1 else {}
    tag = sys.argv[2] if len(sys.argv) > 2 else ''
    build('m%s.s' % tag, None, opt)
    for i, st in enumerate((ST1, ST2, ST3, ST4)):
        build('m%s_st%d.s' % (tag, i + 1), st, opt)
```
